```python
import torch

def _softmax(x, axis=-1):
    return torch.softmax(x, dim=axis)
def _gelu(x):
    return torch.nn.functional.gelu(x, approximate="tanh")
def _silu(x):
    return torch.nn.functional.silu(x)
def _sigmoid(x):
    return torch.sigmoid(x)
def _layernorm(x, axis=-1, eps=1e-5):
    m = x.mean(dim=axis, keepdim=True)
    v = x.var(dim=axis, keepdim=True, unbiased=False)
    return (x - m) / torch.sqrt(v + eps)
def _scatter_add(tgt, idx, src, axis=0):
    return tgt.clone().index_add_(axis, idx, src)
def _segment_sum(src, seg, n):
    out = torch.zeros((n,) + src.shape[1:], dtype=src.dtype)
    return out.index_add_(0, seg, src)
def _pad(x, pw):
    flat = tuple(v for pair in reversed(pw) for v in pair)
    return torch.nn.functional.pad(x, flat)

kernel_name = 'gated_mix__linear_attn_block__mixer_s_mlp__prompt'

def setup_inputs():

    _w = (lambda a: (lambda t: t.to(torch.bfloat16) if t.is_floating_point() else t)(torch.as_tensor(a)))
    def _A_setup():
        B, S, D = 1, 2048, 640
        return {
            "x": _w((lambda *s: torch.randn(*s, dtype=torch.bfloat16) * 0.05)(B, S, D)),
            "wqkv": _w((lambda *s: torch.randn(*s, dtype=torch.bfloat16) * 3.2)(D, 3 * D)),
            "wo": _w((lambda *s: torch.randn(*s, dtype=torch.bfloat16) * 1.6)(D, D)),
        }
    _A_in = _A_setup()

    def _B_setup():
        B, S, D, F = 1, 2048, 640, 1728
        return {
            "x":  _w((lambda *s: torch.randn(*s, dtype=torch.bfloat16) * 0.05)(B, S, D)),
            "w1": _w((lambda *s: torch.randn(*s, dtype=torch.bfloat16) * 3.2)(D, D) * (D ** -0.5)),
            "w2": _w((lambda *s: torch.randn(*s, dtype=torch.bfloat16) * 3.2)(D, D) * (D ** -0.5)),
            "w3": _w((lambda *s: torch.randn(*s, dtype=torch.bfloat16) * 3.2)(D, F) * (D ** -0.5)),
            "w4": _w((lambda *s: torch.randn(*s, dtype=torch.bfloat16) * 3.2)(F, D) * (F ** -0.5)),
        }
    _B_in = _B_setup()

    return {
        "A_x": _A_in["x"],
        "A_wqkv": _A_in["wqkv"],
        "A_wo": _A_in["wo"],
        "B_x": _B_in["x"],
        "B_w1": _B_in["w1"],
        "B_w2": _B_in["w2"],
        "B_w3": _B_in["w3"],
        "B_w4": _B_in["w4"],
        "gate_w": _w((lambda *s: torch.randn(*s, dtype=torch.bfloat16) * 0.05)(640) * 16.0),
    }

def reference(A_x, A_wqkv, A_wo, B_x, B_w1, B_w2, B_w3, B_w4, gate_w):
    def _A_ref(x, wqkv, wo):
        B, S, D = x.shape
        H = 32; Dh = D // H
        qkv = (lambda x, *d: x.permute(*d))((x @ wqkv).reshape(B, S, 3, H, Dh), 2, 0, 3, 1, 4)
        q, k, v = qkv[0], qkv[1], qkv[2]
        phi = lambda t: torch.where(t > 0, t + 1, torch.exp(t)) + 1e-6
        pq, pk = phi(q), phi(k)
        kv = torch.einsum("bhsd,bhse->bhde", pk, v)
        z = torch.einsum("bhsd->bhd", pk)
        num = torch.einsum("bhqd,bhde->bhqe", pq, kv)
        den = torch.einsum("bhqd,bhd->bhq", pq, z)[..., None] + 1e-6
        o = num / den
        return (lambda x, *d: x.permute(*d))(o, 0, 2, 1, 3).reshape(B, S, D) @ wo

    def _B_ref(x, w1, w2, w3, w4):
        B, S, D = x.shape
        h = _gelu(_layernorm(x, axis=-1) @ w1)
        c = D // 4
        g0 = _pad(h[:, :, 0*c:1*c], ((0, 0), (1, 0), (0, 0)))[:, :S, :]
        g1 = _pad(h[:, :, 1*c:2*c], ((0, 0), (0, 1), (0, 0)))[:, 1:, :]
        g2 = _pad(h[:, :, 2*c:3*c], ((0, 0), (2, 0), (0, 0)))[:, :S, :]
        g3 = _pad(h[:, :, 3*c:   ], ((0, 0), (0, 2), (0, 0)))[:, 2:, :]
        hs = torch.concatenate([g0, g1, g2, g3], axis=-1) @ w2
        x1 = x + hs
        h2 = _gelu(_layernorm(x1, axis=-1) @ w3) @ w4
        return x1 + h2

    x = A_x
    g = _sigmoid((x * gate_w).sum(-1, keepdims=True))
    a = _A_ref(x, A_wqkv, A_wo)
    b = _B_ref(x, B_w1, B_w2, B_w3, B_w4)
    return g * a + (1 - g) * b
```

```python
from emit import *

MF = 'v_mfma_f32_16x16x32_bf16'
MF16 = 'v_mfma_f32_16x16x16_bf16'


class CoreB:
    def __init__(self, e, name, TT, NT, NCH, R, D, AR, DCH, acc, aA, aW, vL16, vWA, srdA, srdW,
                 sAO, a_stride_c, a_stride_t, sWO, sM0, sT, lds_base=0, ldflags=''):
        self.__dict__.update(locals())
        self.NST = (NCH + 3) // 4
        self.slot = 4 * NT * 1024

    def accr(self, tt, u):
        return self.acc + (tt * self.NT + u) * 4

    def areg(self, c, tt):
        s = c // 4
        return self.aA + (((s % self.AR) * 4 + c % 4) * self.TT + tt) * 4

    def wreg(self, c, u):
        return self.aW + ((c % self.DCH) * self.NT + u) * 4

    def stage_loads(self, s):
        e = self.e
        out = []
        slot = (s % self.R) * self.slot
        woff = s * 4 * self.NT * 1024
        for g0 in range(0, self.NT, 4):
            n = min(4, self.NT - g0)
            def setup(e, g0=g0):
                e(f's_add_u32 m0, s{self.sM0}, {slot + g0*1024}')
                e(f's_add_u32 s{self.sT}, s{self.sWO}, {woff + g0*1024}')
            out.append(('s', setup))
            for i in range(n):
                out.append(('v', lambda e, i=i: e.vm(
                    f'buffer_load_dwordx4 v{self.vL16}, s[{self.srdW}:{self.srdW+3}], s{self.sT} offen offset:{1024*i} lds', ('st', s))))
        if self.a_stride_c == 1024:
            for tt in range(self.TT):
                for cc in range(4):
                    c = 4 * s + cc
                    if c >= self.NCH:
                        continue
                    def ld(e, c=c, tt=tt, cc=cc):
                        if cc == 0:
                            e(f's_add_u32 s{self.sT+1}, s{self.sAO}, {4*s*1024 + tt*self.a_stride_t}')
                        e.vm(f'buffer_load_dwordx4 {ar(self.areg(c, tt), 4)}, v{self.vL16}, s[{self.srdA}:{self.srdA+3}], s{self.sT+1} offen offset:{1024*cc} {self.ldflags}', ('st', s))
                    out.append(('v', ld))
        else:
            for cc in range(4):
                c = 4 * s + cc
                if c >= self.NCH:
                    continue
                for tt in range(self.TT):
                    off = c * self.a_stride_c + tt * self.a_stride_t
                    def ld(e, c=c, tt=tt, off=off):
                        e(f's_add_u32 s{self.sT+1}, s{self.sAO}, {off}')
                        e.vm(f'buffer_load_dwordx4 {ar(self.areg(c, tt), 4)}, v{self.vL16}, s[{self.srdA}:{self.srdA+3}], s{self.sT+1} offen {self.ldflags}', ('st', s))
                    out.append(('v', ld))
        return out

    def rd_w(self, e, c, u):
        s = c // 4
        off = (s % self.R) * self.slot + ((c % 4) * self.NT + u) * 1024
        base = self.vWA
        if off >= 65536:
            base = self.vWA + 1 if off < 131072 else self.vWA + 2
            off -= 65536 if off < 131072 else 131072
        e.ds(f'ds_read_b128 {ar(self.wreg(c, u), 4)}, v{base} offset:{off}', ('W', c, u))

    def prologue_loads(self, e, interleave=None):
        for s in range(min(self.D, self.NST)):
            for kind, f in self.stage_loads(s):
                f(e)
                if interleave:
                    interleave(e)

    def run(self, e, extra_fill=None, first_c_zero=True):
        TT, NT, NCH, DCH = self.TT, self.NT, self.NCH, self.DCH
        extra_fill = extra_fill or {}
        e.wait(vm=[('st', 0)])
        e('s_barrier')
        for c in range(min(DCH, NCH)):
            for u in range(NT):
                self.rd_w(e, c, u)
        pending = []
        quota = 0
        for c in range(NCH):
            s, cc = divmod(c, 4)
            tc = c + DCH
            if tc < NCH and tc % 4 == 0:
                ts_ = tc // 4
                e.wait(vm=[('st', ts_)])
                e('s_barrier')
                ns = ts_ - 1 + self.D
                if ns < self.NST and ns >= self.D:
                    assert self.R >= self.NST or (ns % self.R) == ((ts_ - 2) % self.R) or ns - self.R <= ts_ - 2, (ns, ts_)
                    assert not pending
                    pending += self.stage_loads(ns)
            fl = list(extra_fill.get(c, []))
            nslots = NT * TT
            if pending and quota == 0:
                quota = -(-len(pending) // 3)
            take = pending[:quota]
            pending = pending[len(take):]
            if not pending:
                quota = 0
            vq = [f for k, f in take] + fl
            per = -(-len(vq) // nslots) if vq else 0
            for u in range(NT):
                need = [('W', c, u)]
                e.wait(ds=need)
                for tt in range(TT):
                    cr = vr(self.accr(tt, u), 4)
                    cin = '0' if (c == 0 and first_c_zero) else cr
                    e(f'{MF} {cr}, {ar(self.wreg(c, u), 4)}, {ar(self.areg(c, tt), 4)}, {cin}')
                    if tt == TT - 1 and tc < NCH:
                        self.rd_w(e, tc, u)
                    for _ in range(per):
                        if vq:
                            vq.pop(0)(e)
            while vq:
                vq.pop(0)(e)
        assert not pending


def pair_groups(nt, parity):
    out = []
    u = 0
    if parity == 1:
        out.append((0, 1, 0, 1))
        u = 1
        ch = 1
    else:
        ch = 0
    while u + 1 < nt:
        out.append((u, 2, ch, 0))
        u += 2
        ch += 1
    if u < nt:
        out.append((u, 1, ch, 0))
    return out
```

```python
import struct

def f2u(x):
    return struct.unpack('<I', struct.pack('<f', x))[0]

def vr(base, n=1):
    return f'v{base}' if n == 1 else f'v[{base}:{base+n-1}]'

def ar(base, n=1):
    return f'a{base}' if n == 1 else f'a[{base}:{base+n-1}]'

def sr(base, n=1):
    return f's{base}' if n == 1 else f's[{base}:{base+n-1}]'


class E:
    def __init__(self):
        self.L = []
        self.dsq = []
        self.vmq = []
        self.maxds = 0
        self.maxvm = 0
        self.dslog = []

    def __call__(self, s):
        for line in s.strip('\n').split('\n'):
            self.L.append(line)

    def label(self, name):
        self.L.append(name + ':')

    def comment(self, s):
        self.L.append('; ' + s)

    def ds(self, s, tag=None):
        if len(self.dsq) >= 15:
            self._wait(ds_n=13)
        self.L.append(s)
        self.dslog.append((s, tag))
        self.dsq.append(tag)
        self.maxds = max(self.maxds, len(self.dsq))

    def vm(self, s, tag=None):
        if len(self.vmq) >= 63:
            self._wait(vm_n=60)
        self.L.append(s)
        self.vmq.append(tag)
        self.maxvm = max(self.maxvm, len(self.vmq))

    def _wait(self, ds_n=None, vm_n=None):
        parts = []
        if vm_n is not None and vm_n < len(self.vmq):
            parts.append(f'vmcnt({vm_n})')
            self.vmq = self.vmq[len(self.vmq) - vm_n:] if vm_n > 0 else []
        if ds_n is not None and ds_n < len(self.dsq):
            parts.append(f'lgkmcnt({ds_n})')
            self.dsq = self.dsq[len(self.dsq) - ds_n:] if ds_n > 0 else []
        if parts:
            self.L.append('s_waitcnt ' + ' '.join(parts))

    def _need(self, q, tags):
        idx = -1
        for t in tags:
            for i in range(len(q) - 1, -1, -1):
                if q[i] == t:
                    idx = max(idx, i)
                    break
        if idx < 0:
            return None
        return len(q) - 1 - idx

    def wait(self, ds=(), vm=()):
        dn = self._need(self.dsq, ds) if ds else None
        vn = self._need(self.vmq, vm) if vm else None
        self._wait(dn, vn)

    def wait_ds_all(self):
        self._wait(ds_n=0)

    def wait_vm_all(self):
        self._wait(vm_n=0)

    def force_wait(self, vm=None, ds=None):
        parts = []
        if vm is not None:
            parts.append(f'vmcnt({vm})')
            if vm < len(self.vmq):
                self.vmq = self.vmq[len(self.vmq) - vm:] if vm > 0 else []
        if ds is not None:
            parts.append(f'lgkmcnt({ds})')
            if ds < len(self.dsq):
                self.dsq = self.dsq[len(self.dsq) - ds:] if ds > 0 else []
        self.L.append('s_waitcnt ' + ' '.join(parts))

    def fork(self):
        e = E()
        e.dsq = list(self.dsq)
        e.vmq = list(self.vmq)
        return e

    def absorb(self, other):
        self.L += other.L
        self.dsq = list(other.dsq)
        self.vmq = list(other.vmq)
        self.maxds = max(self.maxds, other.maxds)
        self.maxvm = max(self.maxvm, other.maxvm)

    def text(self):
        return '\n'.join(self.L) + '\n'


def descriptor(name, vgprs=256, agprs=256, sgprs=96):
    nfv = vgprs + agprs
    return f'''
.section .rodata,"a"
.p2align 6
.amdhsa_kernel {name}
  .amdhsa_next_free_vgpr {nfv}
  .amdhsa_next_free_sgpr {sgprs}
  .amdhsa_accum_offset {vgprs}
  .amdhsa_group_segment_fixed_size 0
  .amdhsa_kernarg_size 96
  .amdhsa_user_sgpr_count 2
  .amdhsa_user_sgpr_kernarg_segment_ptr 1
  .amdhsa_system_sgpr_workgroup_id_x 1
.end_amdhsa_kernel
.text
'''
```

```python
from emit import *
import layout as LY

OPT = dict(nodma=False, nomfma=False, nords=False)
SLOT = 36864
XB = 0
WB = 16384
RLB = 2 * SLOT
EXB = 3 * SLOT
ONESB = 151552
GATEB = ONESB + 128
CSB = 154112

LOG2E = 1.4426950408889634
GC1 = -2.0 * 0.7978845608028654 * LOG2E
GC2 = GC1 * 0.044715

sW = 3
sX, sWQKV, sWO, sW1, sW2, sW3, sW4, sGW, sWS = 8, 10, 12, 16, 18, 20, 22, 24, 26
sXCD, sY, sTB, sSUB, sTYPE = 28, 29, 30, 31, 32
SRD_X, SRD_W, SRD_WS, SRD_RL, SRD_HF, SRD_GW = 36, 40, 44, 48, 52, 56
sRS, sSEG0, sSEGD, sST, sXO, sWO_, sWSTEP, sDSLOT, sRSLOT, sM0X, sM0W = 60, 61, 62, 63, 64, 65, 66, 67, 68, 69, 70
sT0, sT1, sT2, sT3 = 71, 72, 73, 74
sMA, sMB, sMC = 76, 78, 80
sNC, sRDST, sRSTEP, sISW3, sCSD, sRRS, sRSO = 82, 83, 84, 85, 86, 87, 88
sM0W2 = 89

vL, vG, vJ = 1, 2, 3
vXD = 4
vWD = 8
vXAb = 13
vWAb, vWA9b = 15, 16
vCAb = 17
vGA = 20
vGST = 21
vXA = 22
vWA, vWA9 = 24, 25
vCA = 26
vRLD = 29
vRLA = 30
vL16 = 31
vT = 32
ACC = 64
ACS = 144
ACG = 152
ACC_C = 160
vE = 172

aX = 0
aW = 16
aWC = 56
aGF = 68
aONE = 76

MF = 'v_mfma_f32_16x16x32_bf16'


def acc(tt, t):
    return ACC + (tt * 10 + t) * 4


def srd(e, base, ptr, size, off=None):
    if off is None:
        e(f's_mov_b32 s{base}, s{ptr}')
        e(f's_mov_b32 s{base+1}, s{ptr+1}')
    else:
        e(f's_add_u32 s{base}, s{ptr}, {off}')
        e(f's_addc_u32 s{base+1}, s{ptr+1}, 0')
    e(f's_mov_b32 s{base+2}, {size}')
    e(f's_mov_b32 s{base+3}, 0x20000')


vTS = 253


def ts(e, i, on, real=False):
    if on:
        e(f's_mem{"real" if real else ""}time s[98:99]')
        e('s_waitcnt lgkmcnt(0)')
        e(f'v_writelane_b32 v{vTS}, s98, {i}')


def ts_store(e, kidx, on, ws_srd, name):
    if not on:
        return
    e('s_waitcnt vmcnt(0)')
    ts(e, 62, on)
    ts(e, 63, on, real=True)
    e(f's_lshl_b32 s98, s2, 8')
    e(f's_add_u32 s98, s98, {LY.TS + kidx * 256 * 256}')
    e('v_lshlrev_b32 v39, 2, v0')
    e('v_cmp_gt_u32 vcc, 64, v0')
    e(f's_and_saveexec_b64 s[96:97], vcc')
    e(f's_cbranch_execz L_ts_{name}')
    e(f'buffer_store_dword v{vTS}, v39, s[{ws_srd}:{ws_srd+3}], s98 offen')
    e(f'L_ts_{name}:')
    e(f's_mov_b64 exec, s[96:97]')


def issue_stage_dma(e, which, D=None):
    if which == 0:
        e(f's_add_u32 m0, s{sDSLOT}, s{sM0X}')
        e('s_nop 0')
    if which == 4:
        e(f's_add_u32 m0, s{sDSLOT}, s{sM0W}')
        e('s_nop 0')
    if which == 8:
        e(f's_add_u32 s{sT0}, s{sDSLOT}, s{sM0W}')
        e(f's_add_u32 m0, s{sT0}, 4096')
        e('s_nop 0')
    if which < 4:
        e.vm(f'buffer_load_dwordx4 v{vXD+which}, s[{SRD_X}:{SRD_X+3}], s{sXO} offen offset:{1024*which} lds', 'dma')
    elif which < 8:
        i = which - 4
        e.vm(f'buffer_load_dwordx4 v{vWD+i}, s[{SRD_W}:{SRD_W+3}], s{sWO_} offen offset:{1024*i} lds', 'dma')
    else:
        e.vm(f'buffer_load_dwordx4 v{vWD+4}, s[{SRD_W}:{SRD_W+3}], s{sWO_} offen lds', 'dma')


def advance_dma(e):
    e(f's_add_u32 s{sXO}, s{sXO}, 128')
    e(f's_add_u32 s{sWO_}, s{sWO_}, s{sWSTEP}')
    e(f's_add_u32 s{sDSLOT}, s{sDSLOT}, {SLOT}')
    e(f's_cmp_eq_u32 s{sDSLOT}, {4*SLOT}')
    e(f's_cselect_b32 s{sDSLOT}, 0, s{sDSLOT}')


def rd_w(e, kc, t):
    if OPT['nords']:
        return
    base = aW + 4 * t
    for hf in range(2):
        if t < 9:
            e.ds(f'ds_read_b64_tr_b16 {ar(base+2*hf,2)}, v{vWA} offset:{32*t + 1280*hf + 10240*kc}', ('W', kc, t))
        else:
            e.ds(f'ds_read_b64_tr_b16 {ar(base+2*hf,2)}, v{vWA9} offset:{1280*hf + 10240*kc}', ('W', kc, t))


def rd_x(e, kc):
    for tt in range(2):
        e.ds(f'ds_read_b128 {ar(aX + (kc*2+tt)*4, 4)}, v{vXA+kc} offset:{2048*tt}', ('X', kc))


def rd_g(e, kc):
    e.ds(f'ds_read_b128 {ar(aGF + 4*kc, 4)}, v{vGA} offset:{64*kc}', ('G', kc))


def rd_c(e, kc, u):
    for hf in range(2):
        e.ds(f'ds_read_b64_tr_b16 {ar(aWC + 4*u + 2*hf, 2)}, v{vCA+u} offset:{1280*hf + 10240*kc}', ('C', kc, u))


def rd_w1(e, kc, t, hf):
    if OPT['nords']:
        return
    base = aW + 4 * t
    if t < 9:
        e.ds(f'ds_read_b64_tr_b16 {ar(base+2*hf,2)}, v{vWA} offset:{32*t + 1280*hf + 10240*kc}', ('W', kc, t))
    else:
        e.ds(f'ds_read_b64_tr_b16 {ar(base+2*hf,2)}, v{vWA9} offset:{1280*hf + 10240*kc}', ('W', kc, t))


def rd_x1(e, kc, tt):
    e.ds(f'ds_read_b128 {ar(aX + (kc*2+tt)*4, 4)}, v{vXA+kc} offset:{2048*tt}', ('X', kc))


def rd_c1(e, kc, u, hf):
    e.ds(f'ds_read_b64_tr_b16 {ar(aWC + 4*u + 2*hf, 2)}, v{vCA+u} offset:{1280*hf + 10240*kc}', ('C', kc, u))


def dma_parts(which):
    parts = []
    if which == 0:
        parts.append(lambda e: e(f's_add_u32 m0, s{sDSLOT}, s{sM0X}'))
    if which == 4:
        parts.append(lambda e: e(f's_add_u32 m0, s{sDSLOT}, s{sM0W}'))
    if which == 8:
        parts.append(lambda e: e(f's_add_u32 m0, s{sDSLOT}, s{sM0W2}'))
    if which < 4:
        op = f'buffer_load_dwordx4 v{vXD+which}, s[{SRD_X}:{SRD_X+3}], s{sXO} offen offset:{1024*which} lds'
    elif which < 8:
        i = which - 4
        op = f'buffer_load_dwordx4 v{vWD+i}, s[{SRD_W}:{SRD_W+3}], s{sWO_} offen offset:{1024*i} lds'
    else:
        op = f'buffer_load_dwordx4 v{vWD+4}, s[{SRD_W}:{SRD_W+3}], s{sWO_} offen lds'
    return parts, op


DIST = 5
CPOS = (5, 7, 9)


def fillers(kind, dma):
    F = {(kc, t): [] for kc in range(2) for t in range(10)}
    def add(kc, t, f): F[(kc, t)].append(f)
    for kc in range(2):
        for t in range(10):
            nt = t + DIST
            if nt < 10:
                tgt = (kc, nt)
            else:
                tgt = (1 - kc, nt - 10)
            if kc == 1 and t == 10 - DIST:
                add(kc, t, lambda e: e(f'v_add_u32 v{vWA}, s{sRSLOT}, v{vWAb}'))
            add(kc, t, lambda e, tgt=tgt: rd_w1(e, tgt[0], tgt[1], 0))
            add(kc, t, lambda e, tgt=tgt: rd_w1(e, tgt[0], tgt[1], 1))
    add(0, 0, lambda e: e(f's_add_u32 s{sRSLOT}, s{sRSLOT}, {SLOT}'))
    add(0, 1, lambda e: (e(f's_cmp_eq_u32 s{sRSLOT}, {4*SLOT}'), e(f's_cselect_b32 s{sRSLOT}, 0, s{sRSLOT}')))
    add(0, 2, lambda e: e(f'v_add_u32 v{vXA}, s{sRSLOT}, v{vXAb}'))
    add(1, 4, lambda e: e(f'v_add_u32 v{vXA+1}, s{sRSLOT}, v{vXAb+1}'))
    add(1, 6, lambda e: e(f'v_add_u32 v{vWA9}, s{sRSLOT}, v{vWA9b}'))
    xs = (1, 3) if kind == 'w1' else (1, 2)
    for kc in range(2):
        add(kc, xs[0], lambda e, kc=kc: rd_x1(e, 1 - kc, 0))
        add(kc, xs[1], lambda e, kc=kc: rd_x1(e, 1 - kc, 1))
    if kind == 'w1':
        add(1, 0, lambda e: e(f'v_add_u32 v{vGA}, v{vGA}, v{vGST}'))
        for u in range(3):
            add(1, 2 + u if u < 2 else 4, lambda e, u=u: e(f'v_add_u32 v{vCA+u}, s{sRSLOT}, v{vCAb+u}'))
        for kc in range(2):
            add(kc, 3, lambda e, kc=kc: rd_g(e, 1 - kc))
            for u in range(3):
                F[(kc, CPOS[u], 'last')] = [lambda e, kc=kc, u=u: rd_c1(e, 1 - kc, u, 0),
                                           lambda e, kc=kc, u=u: rd_c1(e, 1 - kc, u, 1)]
    if dma and not OPT['nodma']:
        pos = [(0, 1), (0, 3), (0, 5), (0, 7), (0, 9), (1, 1), (1, 3), (1, 6), (1, 8)] if kind != 'w1' else \
              [(0, 0), (0, 2), (0, 4), (0, 6), (0, 8), (1, 1), (1, 3), (1, 6), (1, 8)]
        for i, p in enumerate(pos):
            parts, op = dma_parts(i)
            q = (p[0], p[1] - 1) if p[1] > 0 else p
            for f in parts:
                F[q].append(f)
                if q == p:
                    F[q].append(lambda e: e('s_nop 0'))
            F[p].append(lambda e, op=op: e.vm(op, 'dma'))
        add(1, 9, lambda e: advance_dma(e))
    return F


def stage_body(e, kind, dma, name):
    F = fillers(kind, dma)
    for kc in range(2):
        if kc == 1:
            if dma:
                e.force_wait(vm=0 if OPT['nodma'] else MID_VM)
            else:
                e(f's_cmp_eq_u32 s{sST}, 8')
                e(f's_cbranch_scc0 L_wd_{name}')
                e('s_waitcnt vmcnt(7)')
                e(f'L_wd_{name}:')
            e('s_barrier')
        for t in range(10):
            need = [('W', kc, t)]
            if t == 0:
                need.append(('X', kc))
            mf = []
            for tt in range(2):
                xa = ar(aX + (kc*2+tt)*4, 4)
                wa = ar(aW + 4*t, 4)
                c = vr(acc(tt, t), 4)
                mf.append(f'{MF} {c}, {xa}, {wa}, {c}' if kind == 'kv' else f'{MF} {c}, {wa}, {xa}, {c}')
            if kind == 'w1':
                if t == 1:
                    need.append(('G', kc))
                    for tt in range(2):
                        c = vr(ACS + 4*tt, 4)
                        mf.append(f'{MF} {c}, {ar(aGF+4*kc,4)}, {ar(aX + (kc*2+tt)*4, 4)}, {c}')
                if t == 3:
                    for tt in range(2):
                        c = vr(ACG + 4*tt, 4)
                        xa = ar(aX + (kc*2+tt)*4, 4)
                        mf.append(f'{MF} {c}, {xa}, {xa}, {c}')
                if t in CPOS:
                    u = CPOS.index(t)
                    need.append(('C', kc, u))
                    c = vr(ACC_C + 4*u, 4)
                    mf.append(f'{MF} {c}, {ar(aWC+4*u,4)}, {ar(aONE,4)}, {c}')
            e.wait(ds=need)
            fl = list(F[(kc, t)])
            per = max(1, -(-len(fl) // len(mf)))
            for i, m in enumerate(mf):
                if not OPT['nomfma']:
                    e(m)
                take = fl[:per] if i < len(mf) - 1 else fl
                fl = fl[len(take):]
                for f in take:
                    f(e)
            for f in F.get((kc, t, 'last'), []):
                f(e)


MID_VM = 5


def main_loop(e, kind, TSON=False):
    probe = E()
    stage_body(probe, kind, False, 'probe')
    half = [i for i, l in enumerate(probe.L) if l == 's_barrier'][0]
    n_first = sum(1 for l in probe.L[:half] if l.startswith('ds_'))
    for line, tag in probe.dslog[n_first:]:
        if tag[1] == 0:
            e.ds(line, tag)
    def sim(dma, name):
        a = e.fork(); stage_body(a, kind, dma, name)
        b = a.fork(); stage_body(b, kind, dma, name)
        c = b.fork(); stage_body(c, kind, dma, name)
        assert b.L == c.L, 'loop body not in steady state'
        def waits_ok(x, y):
            xi = [l for l in x.L if not l.startswith('s_waitcnt lgkm')]
            yi = [l for l in y.L if not l.startswith('s_waitcnt lgkm')]
            assert xi == yi
        waits_ok(a, b)
        return a, b
    nA = f'{kind}_a'
    a, body = sim(True, nA)
    if len(e.dsq) > len(body.dsq):
        e.force_wait(ds=len(body.dsq))
    assert e.dsq == body.dsq, (e.dsq, body.dsq)
    a, body = sim(True, nA)
    check_first_iter(a, body)
    e(f's_mov_b32 s{sST}, 0')
    e.label(f'L_loopA_{kind}')
    e.L += body.L
    e.dsq = list(body.dsq); e.vmq = list(body.vmq)
    e(f's_add_u32 s{sST}, s{sST}, 1')
    e(f's_cmp_lt_u32 s{sST}, 8')
    e(f's_cbranch_scc1 L_loopA_{kind}')
    ts(e, 11, TSON)
    relayout_decode(e, kind)
    relayout_dma(e, kind)
    nB = f'{kind}_b'
    a, body = sim(False, nB)
    check_first_iter(a, body)
    e.label(f'L_loopB_{kind}')
    e.L += body.L
    e.dsq = list(body.dsq); e.vmq = []
    e(f's_add_u32 s{sST}, s{sST}, 1')
    e(f's_cmp_lt_u32 s{sST}, 10')
    e(f's_cbranch_scc1 L_loopB_{kind}')
    e.force_wait(ds=0, vm=0)
    e('s_barrier')
    e.maxds = max(e.maxds, body.maxds)


def check_first_iter(a, b):
    def stream(x):
        out = []; last = None
        for l in x.L:
            if l.startswith('s_waitcnt') and 'lgkmcnt' in l:
                n = int(l.split('lgkmcnt(')[1].split(')')[0])
                last = n if last is None else min(last, n)
            else:
                out.append((l, last)); last = None
        return out
    for (la, wa), (lb, wb) in zip(stream(a), stream(b)):
        assert la == lb or la.startswith('s_waitcnt'), (la, lb)
        if wa is not None:
            assert wb is not None and wb <= wa, (la, wa, wb)


def relayout_decode(e, nm):
    t0 = vT
    e(f's_mov_b32 s{sNC}, 0')
    e(f's_mov_b32 s{sISW3}, 0')
    e(f's_mov_b32 s{SRD_RL}, s{sW3}')
    e(f's_mov_b32 s{SRD_RL+1}, s{sW3+1}')
    e(f's_mov_b32 s{SRD_RL+2}, {640*3456}')
    e(f's_mov_b32 s{SRD_RL+3}, 0x20000')
    e(f's_movk_i32 s{sRRS}, 3456')
    e(f's_mov_b32 s{sT0}, 0')
    e(f's_mov_b32 s{sT1}, 0')
    e(f's_mov_b32 s{sRDST}, 0')
    e(f's_mov_b32 s{sRSTEP}, 0')
    e(f's_mov_b32 s{sCSD}, 0')
    e('s_cmp_lt_u32 s2, 81')
    e('s_cbranch_scc0 L_rl_n3_' + nm)
    e(f's_mul_i32 s{sT0}, s2, 21846')
    e(f's_lshr_b32 s{sT0}, s{sT0}, 16')
    e(f's_mul_i32 s{sT2}, s{sT0}, 3')
    e(f's_sub_u32 s{sT2}, s2, s{sT2}')
    e(f's_mul_i32 s{sT1}, s{sT2}, 7')
    e(f's_cmp_eq_u32 s{sT2}, 2')
    e(f's_cselect_b32 s{sNC}, 6, 7')
    e(f's_mov_b32 s{sISW3}, 1')
    e(f's_lshl_b32 s{sT3}, s{sT0}, 2')
    e(f's_add_u32 s{sT3}, s{sT3}, s{sW}')
    e(f's_mul_i32 s{sCSD}, s{sT2}, {1728*4}')
    e(f's_lshl_b32 s{sT2}, s{sT3}, 6')
    e(f's_add_u32 s{sCSD}, s{sCSD}, s{sT2}')
    e(f's_add_u32 s{sCSD}, s{sCSD}, {LY.CS3}')
    e(f's_mul_i32 s{sT2}, s{sT3}, 7282')
    e(f's_lshr_b32 s{sT2}, s{sT2}, 16')
    e(f's_mul_i32 s{sRDST}, s{sT2}, 9')
    e(f's_sub_u32 s{sT3}, s{sT3}, s{sRDST}')
    e(f's_mul_i32 s{sT2}, s{sT2}, 20')
    e(f's_add_u32 s{sT2}, s{sT2}, s{sT1}')
    e(f's_mul_i32 s{sT2}, s{sT2}, 9')
    e(f's_add_u32 s{sT2}, s{sT2}, s{sT3}')
    e(f's_lshl_b32 s{sRDST}, s{sT2}, 10')
    e(f's_add_u32 s{sRDST}, s{sRDST}, {LY.W3F}')
    e(f's_movk_i32 s{sRSTEP}, 9216')
    e('s_branch L_rl_done_' + nm)
    e.label('L_rl_n3_' + nm)
    e(f's_movk_i32 s{sRRS}, 1280')
    e('s_cmp_lt_u32 s2, 161')
    e('s_cbranch_scc0 L_rl_n4_' + nm)
    e(f's_sub_u32 s{sT3}, s2, 81')
    e(f's_lshr_b32 s{sT0}, s{sT3}, 3')
    e(f's_and_b32 s{sT2}, s{sT3}, 7')
    e(f's_mul_i32 s{sT1}, s{sT2}, 7')
    e(f's_cmp_eq_u32 s{sT2}, 7')
    e(f's_cselect_b32 s{sNC}, 5, 7')
    e(f's_mov_b32 s{SRD_RL}, s{sW4}')
    e(f's_mov_b32 s{SRD_RL+1}, s{sW4+1}')
    e(f's_mov_b32 s{SRD_RL+2}, {1728*1280}')
    e(f's_lshl_b32 s{sT3}, s{sT0}, 2')
    e(f's_add_u32 s{sT3}, s{sT3}, s{sW}')
    e(f's_mul_i32 s{sT2}, s{sT3}, 13108')
    e(f's_lshr_b32 s{sT2}, s{sT2}, 16')
    e(f's_mul_i32 s{sRDST}, s{sT2}, 5')
    e(f's_sub_u32 s{sT3}, s{sT3}, s{sRDST}')
    e(f's_mul_i32 s{sT2}, s{sT2}, 54')
    e(f's_add_u32 s{sT2}, s{sT2}, s{sT1}')
    e(f's_mul_i32 s{sT2}, s{sT2}, 5')
    e(f's_add_u32 s{sT2}, s{sT2}, s{sT3}')
    e(f's_lshl_b32 s{sRDST}, s{sT2}, 10')
    e(f's_add_u32 s{sRDST}, s{sRDST}, {LY.W4F}')
    e(f's_movk_i32 s{sRSTEP}, 5120')
    e('s_branch L_rl_done_' + nm)
    e.label('L_rl_n4_' + nm)
    e('s_cmp_lt_u32 s2, 221')
    e('s_cbranch_scc0 L_rl_done_' + nm)
    e('s_cmp_lt_u32 s2, 191')
    e(f's_movk_i32 s{sT3}, 191')
    e(f's_cselect_b32 s{sT3}, 161, s{sT3}')
    e(f's_cselect_b32 s{SRD_RL}, s{sW2}, s{sWO}')
    e(f's_cselect_b32 s{SRD_RL+1}, s{sW2+1}, s{sWO+1}')
    e(f's_cselect_b32 s{sCSD}, 5, 10')
    e(f's_movk_i32 s{sISW3}, 6554')
    e(f's_cselect_b32 s{sISW3}, 13108, s{sISW3}')
    e(f's_mov_b32 s{sRSTEP}, {LY.WOF}')
    e(f's_cselect_b32 s{sRSTEP}, {LY.W2F}, s{sRSTEP}')
    e(f's_mov_b32 s{SRD_RL+2}, {640*1280}')
    e(f's_sub_u32 s{sT3}, s2, s{sT3}')
    e(f's_mul_i32 s{sT0}, s{sT3}, 21846')
    e(f's_lshr_b32 s{sT0}, s{sT0}, 16')
    e(f's_mul_i32 s{sT2}, s{sT0}, 3')
    e(f's_sub_u32 s{sT2}, s{sT3}, s{sT2}')
    e(f's_mul_i32 s{sT1}, s{sT2}, 7')
    e(f's_cmp_eq_u32 s{sT2}, 2')
    e(f's_cselect_b32 s{sNC}, 6, 7')
    e(f's_lshl_b32 s{sT3}, s{sT0}, 2')
    e(f's_add_u32 s{sT3}, s{sT3}, s{sW}')
    e(f's_mul_i32 s{sT2}, s{sT3}, s{sISW3}')
    e(f's_lshr_b32 s{sT2}, s{sT2}, 16')
    e(f's_mul_i32 s{sRDST}, s{sT2}, s{sCSD}')
    e(f's_sub_u32 s{sT3}, s{sT3}, s{sRDST}')
    e(f's_mul_i32 s{sT2}, s{sT2}, 20')
    e(f's_add_u32 s{sT2}, s{sT2}, s{sT1}')
    e(f's_mul_i32 s{sT2}, s{sT2}, s{sCSD}')
    e(f's_add_u32 s{sT2}, s{sT2}, s{sT3}')
    e(f's_lshl_b32 s{sRDST}, s{sT2}, 10')
    e(f's_add_u32 s{sRDST}, s{sRDST}, s{sRSTEP}')
    e(f's_lshl_b32 s{sRSTEP}, s{sCSD}, 10')
    e(f's_mov_b32 s{sISW3}, 0')
    e(f's_mov_b32 s{sCSD}, 0')
    e.label('L_rl_done_' + nm)
    e(f's_cmp_eq_u32 s{sNC}, 0')
    e(f's_cselect_b32 s{SRD_RL+2}, 0, s{SRD_RL+2}')
    e(f's_lshl_b32 s{sT1}, s{sT1}, 5')
    e(f's_lshl_b32 s{sT2}, s{sW}, 3')
    e(f's_add_u32 s{sT1}, s{sT1}, s{sT2}')
    e(f'v_lshrrev_b32 v{t0}, 3, v{vL}')
    e(f'v_add_u32 v{t0}, s{sT1}, v{t0}')
    e(f'v_mul_lo_u32 v{t0}, v{t0}, s{sRRS}')
    e(f'v_and_b32 v{t0+1}, 7, v{vL}')
    e(f'v_lshl_add_u32 v{t0}, v{t0+1}, 4, v{t0}')
    e(f's_lshl_b32 s{sT0}, s{sT0}, 7')
    e(f'v_add_u32 v{vRLD}, s{sT0}, v{t0}')
    e(f'v_lshrrev_b32 v{t0}, 2, v{vJ}')
    e(f'v_lshl_add_u32 v{t0}, v{vG}, 2, v{t0}')
    e(f'v_lshlrev_b32 v{t0}, 7, v{t0}')
    e(f'v_and_b32 v{t0+1}, 3, v{vJ}')
    e(f'v_lshl_add_u32 v{t0}, v{t0+1}, 3, v{t0}')
    e(f's_lshl_b32 s{sT0}, s{sW}, 5')
    e(f's_add_u32 s{sT0}, s{sT0}, {RLB}')
    e(f'v_add_u32 v{vRLA}, s{sT0}, v{t0}')


def relayout_dma(e, name):
    e(f's_lshl_b32 s{sT2}, s{sW}, 10')
    e(f's_add_u32 s{sT2}, s{sT2}, {RLB}')
    e(f's_lshl_b32 s{sT3}, s{sRRS}, 5')
    e(f's_mov_b32 s{sRSO}, 0')
    for b in range(7):
        e(f's_add_u32 m0, s{sT2}, {4096*b}')
        if b:
            e(f's_add_u32 s{sRSO}, s{sRSO}, s{sT3}')
        else:
            e('s_nop 0')
        e.vm(f'buffer_load_dwordx4 v{vRLD}, s[{SRD_RL}:{SRD_RL+3}], s{sRSO} offen lds', 'rl')


def relayout_store(e, name, STF):
    R = 172
    t0 = vT
    e(f's_cmp_eq_u32 s{sNC}, 0')
    e(f's_cbranch_scc1 L_rls_done_{name}')
    for b in range(7):
        e.ds(f'ds_read_b64_tr_b16 {vr(R+4*b,2)}, v{vRLA} offset:{4096*b}', ('RL', b))
        e.ds(f'ds_read_b64_tr_b16 {vr(R+4*b+2,2)}, v{vRLA} offset:{4096*b + 2048}', ('RL', b))
    e(f'v_mov_b32 v{t0+4}, 0')
    e(f'v_mov_b32 v{t0+5}, 0x3f803f80')
    for b in range(7):
        if b >= 5:
            e(f's_cmp_le_u32 s{sNC}, {b}')
            e(f's_cbranch_scc1 L_rls_st_done_{name}')
        e.wait(ds=[('RL', b)])
        e(f'buffer_store_dwordx4 {vr(R+4*b,4)}, v{vL16}, s[{SRD_WS}:{SRD_WS+3}], s{sRDST} offen {STF}')
        e(f's_add_u32 s{sRDST}, s{sRDST}, s{sRSTEP}')
    e.label(f'L_rls_st_done_{name}')
    e('s_waitcnt lgkmcnt(0)')
    e.dsq = []
    e(f's_cmp_eq_u32 s{sISW3}, 0')
    e(f's_cbranch_scc1 L_rls_done_{name}')
    for b in range(7):
        for i in range(4):
            e(f'v_dot2_f32_bf16 v{t0+4}, v{R+4*b+i}, v{t0+5}, v{t0+4}')
    e('s_nop 2')
    e(f'v_mov_b32 v{t0+7}, v{t0+4}')
    e('s_nop 1')
    e(f'v_permlane32_swap_b32 v{t0+4}, v{t0+7}')
    e('s_nop 1')
    e(f'v_add_f32 v{t0+4}, v{t0+4}, v{t0+7}')
    e(f'v_mov_b32 v{t0+7}, v{t0+4}')
    e('s_nop 1')
    e(f'v_permlane16_swap_b32 v{t0+4}, v{t0+7}')
    e('s_nop 1')
    e(f'v_add_f32 v{t0+4}, v{t0+4}, v{t0+7}')
    e(f'v_lshlrev_b32 v{t0+7}, 2, v{vL}')
    e(f'v_cmp_gt_u32 vcc, 16, v{vL}')
    e(f's_and_saveexec_b64 s[{sMA}:{sMA+1}], vcc')
    e(f'buffer_store_dword v{t0+4}, v{t0+7}, s[{SRD_WS}:{SRD_WS+3}], s{sCSD} offen {STF}')
    e(f's_mov_b64 exec, s[{sMA}:{sMA+1}]')
    e.label(f'L_rls_done_{name}')
    e('s_nop 1')


def phi_pair(e, r, vc, vt):
    e(f'v_pk_mul_f32 {vr(vt,2)}, {vr(r,2)}, {vr(vc,2)}')
    e(f'v_min_f32 v{vt}, 0, v{vt}')
    e(f'v_min_f32 v{vt+1}, 0, v{vt+1}')
    e(f'v_exp_f32 v{vt}, v{vt}')
    e(f'v_exp_f32 v{vt+1}, v{vt+1}')
    e(f'v_max_f32 v{r}, 0, v{r}')
    e(f'v_max_f32 v{r+1}, 0, v{r+1}')
    e(f'v_pk_add_f32 {vr(vt,2)}, {vr(vt,2)}, {vr(vc+2,2)}')
    e(f'v_pk_add_f32 {vr(r,2)}, {vr(r,2)}, {vr(vt,2)}')


def gelu_pair(e, r, vc, vt):
    e(f'v_pk_mul_f32 {vr(vt,2)}, {vr(r,2)}, {vr(r,2)}')
    e(f'v_pk_fma_f32 {vr(vt,2)}, {vr(vt,2)}, {vr(vc+2,2)}, {vr(vc,2)}')
    e(f'v_pk_mul_f32 {vr(vt,2)}, {vr(vt,2)}, {vr(r,2)}')
    e(f'v_exp_f32 v{vt}, v{vt}')
    e(f'v_exp_f32 v{vt+1}, v{vt+1}')
    e('s_nop 0')
    e(f'v_pk_add_f32 {vr(vt,2)}, {vr(vt,2)}, 1.0 op_sel_hi:[1,0]')
    e(f'v_rcp_f32 v{vt}, v{vt}')
    e(f'v_rcp_f32 v{vt+1}, v{vt+1}')
    e('s_nop 0')
    e(f'v_pk_mul_f32 {vr(r,2)}, {vr(r,2)}, {vr(vt,2)}')


def gelu_multi(e, regs, vc, vts):
    n = len(regs)
    for r, t in zip(regs, vts):
        e(f'v_pk_mul_f32 {vr(t,2)}, {vr(r,2)}, {vr(r,2)}')
    for r, t in zip(regs, vts):
        e(f'v_pk_fma_f32 {vr(t,2)}, {vr(t,2)}, {vr(vc+2,2)}, {vr(vc,2)}')
    for r, t in zip(regs, vts):
        e(f'v_pk_mul_f32 {vr(t,2)}, {vr(t,2)}, {vr(r,2)}')
    for r, t in zip(regs, vts):
        e(f'v_exp_f32 v{t}, v{t}')
        e(f'v_exp_f32 v{t+1}, v{t+1}')
    if n == 1:
        e('s_nop 0')
    for r, t in zip(regs, vts):
        e(f'v_pk_add_f32 {vr(t,2)}, {vr(t,2)}, 1.0 op_sel_hi:[1,0]')
    for r, t in zip(regs, vts):
        e(f'v_rcp_f32 v{t}, v{t}')
        e(f'v_rcp_f32 v{t+1}, v{t+1}')
    if n == 1:
        e('s_nop 0')
    for r, t in zip(regs, vts):
        e(f'v_pk_mul_f32 {vr(r,2)}, {vr(r,2)}, {vr(t,2)}')


def phi_multi(e, regs, vc, vts):
    n = len(regs)
    for r, t in zip(regs, vts):
        e(f'v_pk_mul_f32 {vr(t,2)}, {vr(r,2)}, {vr(vc,2)}')
    for r, t in zip(regs, vts):
        e(f'v_min_f32 v{t}, 0, v{t}')
        e(f'v_min_f32 v{t+1}, 0, v{t+1}')
    for r, t in zip(regs, vts):
        e(f'v_exp_f32 v{t}, v{t}')
        e(f'v_exp_f32 v{t+1}, v{t+1}')
    for r, t in zip(regs, vts):
        e(f'v_max_f32 v{r}, 0, v{r}')
        e(f'v_max_f32 v{r+1}, 0, v{r+1}')
    for r, t in zip(regs, vts):
        e(f'v_pk_add_f32 {vr(t,2)}, {vr(t,2)}, {vr(vc+2,2)}')
    for r, t in zip(regs, vts):
        e(f'v_pk_add_f32 {vr(r,2)}, {vr(r,2)}, {vr(t,2)}')


def epi_kv(e, STF, TSON):
    name = 'kv'
    relayout_store(e, name, STF)
    ts(e, 12, TSON)
    vc = vE
    vt = vE + 4
    e(f'v_mov_b32 v{vc}, 0x{f2u(LOG2E):08x}')
    e(f'v_mov_b32 v{vc+1}, 0x{f2u(LOG2E):08x}')
    e(f'v_mov_b32 v{vc+2}, 0x{f2u(1e-6):08x}')
    e(f'v_mov_b32 v{vc+3}, 0x{f2u(1e-6):08x}')
    vp = vE + 12
    e(f's_mul_i32 s{sT0}, s{sW}, 10240')
    e(f's_add_u32 s{sT0}, s{sT0}, {EXB}')
    e(f'v_add_u32 v{vT}, s{sT0}, v{vL16}')
    def pack(f):
        p = vp + 4 * (f % 4)
        e(f'v_cvt_pk_bf16_f32 v{p}, v{acc(0,f)}, v{acc(0,f)+1}')
        e(f'v_cvt_pk_bf16_f32 v{p+1}, v{acc(0,f)+2}, v{acc(0,f)+3}')
        e(f'v_cvt_pk_bf16_f32 v{p+2}, v{acc(1,f)}, v{acc(1,f)+1}')
        e(f'v_cvt_pk_bf16_f32 v{p+3}, v{acc(1,f)+2}, v{acc(1,f)+3}')
        e.ds(f'ds_write_b128 v{vT}, {vr(p,4)} offset:{1024*f}', 'exw')
    for f in range(5, 10):
        pack(f)
    for t in range(5):
        regs = [acc(tt, t) + 2*h for tt in range(2) for h in range(2)]
        phi_multi(e, regs, vc, [vt, vt+2, vt+4, vt+6])
        pack(t)
    ts(e, 8, TSON)
    e('s_waitcnt lgkmcnt(0)')
    e.dsq = []
    e('s_barrier')
    ts(e, 9, TSON)
    e(f's_lshl_b32 s{sT0}, s{sW}, 10')
    e(f's_add_u32 s{sT0}, s{sT0}, {EXB - 1024}')
    e(f'v_add_u32 v{vT}, s{sT0}, v{vL16}')
    e(f's_cmp_eq_u32 s{sW}, 0')
    e(f's_movk_i32 s{sT1}, 4096')
    e(f's_cselect_b32 s{sT1}, 3072, s{sT1}')
    e(f's_add_u32 s{sT1}, s{sT1}, {EXB}')
    e(f'v_add_u32 v{vT+1}, s{sT1}, v{vL16}')
    e(f'v_add_u32 v{vT+2}, {EXB + 9*1024}, v{vL16}')
    D0 = 200
    for i in range(24):
        e(f'v_mov_b32 v{D0+i}, 0')
    A0 = 96
    for wp in range(4):
        b = A0 + 24*wp
        for d in range(3):
            e.ds(f'ds_read_b128 {ar(b + 4*d, 4)}, v{vT} offset:{10240*wp + 1024*d}', ('A', wp))
        e.ds(f'ds_read_b128 {ar(b + 12, 4)}, v{vT} offset:{10240*wp + 1024*6}', ('A', wp))
        e.ds(f'ds_read_b128 {ar(b + 16, 4)}, v{vT+1} offset:{10240*wp}', ('A', wp))
        e.ds(f'ds_read_b128 {ar(b + 20, 4)}, v{vT+2} offset:{10240*wp}', ('A', wp))
        if wp >= 1:
            q = wp - 1
            bq = A0 + 24*q
            e.wait(ds=[('A', q)])
            kvjob_mfma(e, bq, D0)
    e.wait_ds_all()
    kvjob_mfma(e, A0 + 24*3, D0)
    e(f's_lshl_b32 s{sT0}, s{sTB}, 3')
    e(f's_add_u32 s{sT0}, s{sT0}, s{sSUB}')
    e(f's_mul_i32 s{sT0}, s{sT0}, 14336')
    e(f's_add_u32 s{sT0}, s{sT0}, {LY.KVP}')
    e(f's_mul_i32 s{sT2}, s{sW}, 3072')
    e(f's_add_u32 s{sT2}, s{sT2}, s{sT0}')
    e(f's_add_u32 s{sT3}, s{sT2}, 1024')
    e('s_nop 3')
    e(f'buffer_store_dwordx4 {vr(D0+4,4)}, v{vL16}, s[{SRD_WS}:{SRD_WS+3}], s{sT2} offen {STF}')
    e(f'buffer_store_dwordx4 {vr(D0+8,4)}, v{vL16}, s[{SRD_WS}:{SRD_WS+3}], s{sT3} offen {STF}')
    e(f's_cmp_eq_u32 s{sW}, 0')
    e('s_cbranch_scc1 L_kv_nom1')
    e(f's_sub_u32 s{sT3}, s{sT2}, 1024')
    e(f'buffer_store_dwordx4 {vr(D0,4)}, v{vL16}, s[{SRD_WS}:{SRD_WS+3}], s{sT3} offen {STF}')
    e.label('L_kv_nom1')
    e(f's_add_u32 s{sT3}, s{sT0}, {13*1024}')
    e(f'v_cmp_eq_u32 vcc, s{sW}, v{vJ}')
    e(f's_and_saveexec_b64 s[{sMA}:{sMA+1}], vcc')
    e(f'buffer_store_dwordx4 {vr(D0+12,4)}, v{vL16}, s[{SRD_WS}:{SRD_WS+3}], s{sT3} offen {STF}')
    e(f's_mov_b64 exec, s[{sMA}:{sMA+1}]')
    e(f's_cmp_lt_u32 s{sW}, 2')
    e('s_cbranch_scc0 L_kv_x2')
    e(f's_lshl_b32 s{sT2}, s{sW}, 10')
    e(f's_add_u32 s{sT2}, s{sT2}, s{sT0}')
    e(f's_add_u32 s{sT2}, s{sT2}, {11*1024}')
    e(f'buffer_store_dwordx4 {vr(D0+16,4)}, v{vL16}, s[{SRD_WS}:{SRD_WS+3}], s{sT2} offen {STF}')
    e('s_branch L_kv_xd')
    e.label('L_kv_x2')
    e(f's_cmp_eq_u32 s{sW}, 2')
    e('s_cbranch_scc0 L_kv_xd')
    e(f'v_cmp_eq_u32 vcc, 4, v{vJ}')
    e(f's_and_saveexec_b64 s[{sMA}:{sMA+1}], vcc')
    e(f'buffer_store_dwordx4 {vr(D0+20,4)}, v{vL16}, s[{SRD_WS}:{SRD_WS+3}], s{sT3} offen {STF}')
    e(f's_mov_b64 exec, s[{sMA}:{sMA+1}]')
    e.label('L_kv_xd')
    ts(e, 10, TSON)


def kvjob_mfma(e, b, D0):
    bv = ar(b + 12, 4)
    for d in range(3):
        c = vr(D0 + 4*d, 4)
        e(f'{MF} {c}, {ar(b + 4*d, 4)}, {bv}, {c}')
    c = vr(D0 + 12, 4)
    e(f'{MF} {c}, {ar(b + 4, 4)}, {ar(aONE,4)}, {c}')
    c = vr(D0 + 16, 4)
    e(f'{MF} {c}, {ar(b + 16, 4)}, {ar(b + 20, 4)}, {c}')
    c = vr(D0 + 20, 4)
    e(f'{MF} {c}, {ar(b + 16, 4)}, {ar(aONE,4)}, {c}')


def epi_q(e, STF, TSON):
    name = 'q'
    relayout_store(e, name, STF)
    ts(e, 12, TSON)
    vc = vE
    vt = vE + 4
    e(f'v_mov_b32 v{vc}, 0x{f2u(LOG2E):08x}')
    e(f'v_mov_b32 v{vc+1}, 0x{f2u(LOG2E):08x}')
    e(f'v_mov_b32 v{vc+2}, 0x{f2u(1e-6):08x}')
    e(f'v_mov_b32 v{vc+3}, 0x{f2u(1e-6):08x}')
    e(f's_lshl_b32 s{sT0}, s{sTB}, 3')
    e(f's_lshl_b32 s{sT1}, s{sW}, 1')
    e(f's_add_u32 s{sT0}, s{sT0}, s{sT1}')
    e(f's_lshl_b32 s{sT0}, s{sT0}, 3')
    e(f's_lshl_b32 s{sT1}, s{sSUB}, 1')
    e(f's_add_u32 s{sT0}, s{sT0}, s{sT1}')
    e(f's_mul_i32 s{sT0}, s{sT0}, 2560')
    e(f's_add_u32 s{sT0}, s{sT0}, {LY.PQ}')
    e(f'v_lshlrev_b32 v{vT}, 3, v{vL}')
    e(f'v_add_u32 v{vT}, 2048, v{vT}')
    P = 184
    k = 0
    for tt in range(2):
        for hh in range(2):
            p = P + 10 * k
            k += 1
            t0 = 5 * hh
            for (ta, n) in ((t0, 2), (t0 + 2, 2), (t0 + 4, 1)):
                regs = []
                for t in range(ta, ta + n):
                    regs += [acc(tt, t), acc(tt, t) + 2]
                phi_multi(e, regs, vc, [vt, vt+2, vt+4, vt+6][:len(regs)])
                for i, r in enumerate(regs):
                    e(f'v_cvt_pk_bf16_f32 v{p + (ta - t0)*2 + i}, v{r}, v{r+1}')
                if ta == t0:
                    e(f's_add_u32 s{sT1}, s{sT0}, {tt*8*2560 + hh*2560}')
                    e(f'buffer_store_dwordx4 {vr(p,4)}, v{vL16}, s[{SRD_WS}:{SRD_WS+3}], s{sT1} offen {STF}')
                elif n == 2:
                    e(f'buffer_store_dwordx4 {vr(p+4,4)}, v{vL16}, s[{SRD_WS}:{SRD_WS+3}], s{sT1} offen offset:1024 {STF}')
                else:
                    e(f'buffer_store_dwordx2 {vr(p+8,2)}, v{vT}, s[{SRD_WS}:{SRD_WS+3}], s{sT1} offen {STF}')
    ts(e, 10, TSON)


def epi_w1(e, STF, TSON):
    name = 'w1'
    relayout_store(e, name, STF)
    ts(e, 12, TSON)
    t0 = vT
    e(f'v_lshlrev_b32 v{t0}, 4, v{vG}')
    e(f's_lshl_b32 s{sT0}, s{sW}, 6')
    e(f's_add_u32 s{sT0}, s{sT0}, {CSB}')
    e(f'v_add_u32 v{t0}, s{sT0}, v{t0}')
    e(f'v_cmp_eq_u32 vcc, 0, v{vJ}')
    e(f's_and_saveexec_b64 s[{sMA}:{sMA+1}], vcc')
    e(f'ds_write_b128 v{t0}, {vr(ACC_C,4)}')
    e(f'ds_write_b128 v{t0}, {vr(ACC_C+4,4)} offset:256')
    e(f'ds_write_b128 v{t0}, {vr(ACC_C+8,4)} offset:512')
    e(f's_mov_b64 exec, s[{sMA}:{sMA+1}]')
    e(f'v_and_b32 v{t0+1}, 3, v{vJ}')
    e(f'v_cmp_eq_u32 s[{sMA}:{sMA+1}], 1, v{t0+1}')
    e(f'v_cmp_eq_u32 s[{sMB}:{sMB+1}], 2, v{t0+1}')
    e(f'v_cmp_eq_u32 s[{sMC}:{sMC+1}], 3, v{t0+1}')
    e(f'v_lshrrev_b32 v{t0+2}, 2, v{vJ}')
    e(f'v_lshlrev_b32 v{t0+2}, 4, v{t0+2}')
    e(f'v_add_u32 v{t0+2}, v{t0+2}, v{vJ}')
    e(f'v_lshlrev_b32 v{t0+2}, 2, v{t0+2}')
    e(f'v_lshlrev_b32 v{t0+3}, 2, v{vJ}')
    vM = 172
    for tt in range(2):
        g0 = ACG + 4*tt
        e(f'v_cndmask_b32 v{t0+4}, v{g0}, v{g0+1}, s[{sMA}:{sMA+1}]')
        e(f'v_cndmask_b32 v{t0+4}, v{t0+4}, v{g0+2}, s[{sMB}:{sMB+1}]')
        e(f'v_cndmask_b32 v{t0+4}, v{t0+4}, v{g0+3}, s[{sMC}:{sMC+1}]')
        e(f'ds_bpermute_b32 v{t0+5+2*tt}, v{t0+2}, v{t0+4}')
        e(f'ds_bpermute_b32 v{t0+6+2*tt}, v{t0+3}, v{ACS+4*tt}')
        e('s_nop 0')
    e('s_waitcnt lgkmcnt(0)')
    e('s_barrier')
    ts(e, 8, TSON)
    CS = 184
    e(f'v_lshlrev_b32 v{t0}, 4, v{vG}')
    e(f'v_add_u32 v{t0}, {CSB}, v{t0}')
    for t in range(10):
        e.ds(f'ds_read_b128 {vr(CS+4*t,4)}, v{t0} offset:{64*t}', 'cs')
    for tt in range(2):
        m = vM + 4*tt
        e(f'v_mul_f32 v{m}, 0x{f2u(-1.0/640):08x}, v{t0+6+2*tt}')
        e(f'v_mul_f32 v{t0+10}, 0x{f2u(1.0/640):08x}, v{t0+5+2*tt}')
        e(f'v_fma_f32 v{t0+10}, -v{m}, v{m}, v{t0+10}')
        e(f'v_add_f32 v{t0+10}, 0x{f2u(1e-5):08x}, v{t0+10}')
        e(f'v_rsq_f32 v{m+2}, v{t0+10}')
        e(f'v_mov_b32 v{m+1}, v{m}')
        e(f'v_mov_b32 v{m+3}, v{m+2}')
    e(f's_cmp_lg_u32 s{sSUB}, 0')
    e('s_cbranch_scc1 L_w1_nogate')
    e(f's_lshl_b32 s{sT0}, s{sTB}, 7')
    e(f's_lshl_b32 s{sT1}, s{sW}, 5')
    e(f's_add_u32 s{sT0}, s{sT0}, s{sT1}')
    e(f's_lshl_b32 s{sT0}, s{sT0}, 2')
    e(f's_add_u32 s{sT0}, s{sT0}, {LY.G}')
    for tt in range(2):
        e(f'v_mul_f32 v{t0+12+tt}, 0x{f2u(-LOG2E):08x}, v{ACS+4*tt}')
    for tt in range(2):
        e(f'v_exp_f32 v{t0+12+tt}, v{t0+12+tt}')
    e('s_nop 0')
    for tt in range(2):
        e(f'v_add_f32 v{t0+12+tt}, 1.0, v{t0+12+tt}')
    for tt in range(2):
        e(f'v_rcp_f32 v{t0+12+tt}, v{t0+12+tt}')
    e(f'v_lshlrev_b32 v{t0+14}, 2, v{vJ}')
    e(f'v_cmp_eq_u32 vcc, 2, v{vG}')
    e(f's_and_saveexec_b64 s[{sMA}:{sMA+1}], vcc')
    for tt in range(2):
        e(f'buffer_store_dword v{t0+12+tt}, v{t0+14}, s[{SRD_WS}:{SRD_WS+3}], s{sT0} offen offset:{64*tt} {STF}')
    e(f's_mov_b64 exec, s[{sMA}:{sMA+1}]')
    e.label('L_w1_nogate')
    vc = 180
    e(f'v_mov_b32 v{vc}, 0x{f2u(GC1):08x}')
    e(f'v_mov_b32 v{vc+1}, 0x{f2u(GC1):08x}')
    e(f'v_mov_b32 v{vc+2}, 0x{f2u(GC2):08x}')
    e(f'v_mov_b32 v{vc+3}, 0x{f2u(GC2):08x}')
    e.wait_ds_all()
    P = 224
    vt = 244
    e(f's_lshr_b32 s{sT0}, s{sSUB}, 1')
    e(f's_add_u32 s{sT0}, s{sT0}, 1')
    e(f's_and_b32 s{sT1}, s{sSUB}, 1')
    e(f's_sub_u32 s{sT2}, 0, s{sT0}')
    e(f's_cmp_eq_u32 s{sT1}, 0')
    e(f's_cselect_b32 s{sT3}, s{sT0}, s{sT2}')
    e(f'v_add_u32 v{t0}, s{sT3}, v{vJ}')
    e(f'v_ashrrev_i32 v{t0+1}, 4, v{t0}')
    e(f'v_and_b32 v{t0}, 15, v{t0}')
    e(f'v_lshlrev_b32 v{t0}, 4, v{t0}')
    e(f'v_lshl_add_u32 v{t0}, v{vG}, 8, v{t0}')
    e(f's_lshl_b32 s{sT0}, s{sTB}, 3')
    e(f's_lshl_b32 s{sT1}, s{sW}, 1')
    e(f's_add_u32 s{sT0}, s{sT0}, s{sT1}')
    e(f'v_add_u32 v{t0+1}, s{sT0}, v{t0+1}')
    e(f's_movk_i32 s{sT2}, 20480')
    for tt in range(2):
        e(f'v_add_u32 v{t0+2}, {tt}, v{t0+1}')
        e(f'v_cmp_gt_i32 vcc, 0, v{t0+2}')
        e(f'v_mul_lo_u32 v{t0+2}, v{t0+2}, s{sT2}')
        e(f'v_add_u32 v{t0+2}, v{t0+2}, v{t0}')
        e(f'v_mov_b32 v{t0+3}, 0x80000000')
        e(f'v_cndmask_b32 v{t0+4+tt}, v{t0+2}, v{t0+3}, vcc')
    e(f's_mul_i32 s{sT1}, s{sSUB}, 5120')
    for tt in range(2):
        m = vM + 4*tt
        for t in range(0, 10, 2):
            regs = [acc(tt, t), acc(tt, t) + 2, acc(tt, t+1), acc(tt, t+1) + 2]
            css = [CS + 4*t, CS + 4*t + 2, CS + 4*(t+1), CS + 4*(t+1) + 2]
            for r, c in zip(regs, css):
                e(f'v_pk_fma_f32 {vr(r,2)}, {vr(c,2)}, {vr(m,2)}, {vr(r,2)}')
            for r in regs:
                e(f'v_pk_mul_f32 {vr(r,2)}, {vr(r,2)}, {vr(m+2,2)}')
            gelu_multi(e, regs, vc, [vt, vt+2, vt+4, vt+6])
            cc = t // 2
            p = P + 4 * ((tt * 5 + cc) % 5)
            for k, r in enumerate(regs):
                e(f'v_cvt_pk_bf16_f32 v{p + k}, v{r}, v{r+1}')
            e(f's_add_u32 s{sT2}, s{sT1}, {1024*cc}')
            e(f'buffer_store_dwordx4 {vr(p,4)}, v{t0+4+tt}, s[{SRD_HF}:{SRD_HF+3}], s{sT2} offen {STF}')
        if tt == 0:
            ts(e, 9, TSON)
    e(f's_cmp_gt_i32 s{sT3}, 0')
    e('s_cbranch_scc0 L_w1_zneg')
    e(f's_or_b32 s{sT0}, s{sTB}, s{sW}')
    e(f's_cmp_eq_u32 s{sT0}, 0')
    e('s_cbranch_scc0 L_w1_zdone')
    e(f'v_cmp_gt_i32 vcc, s{sT3}, v{vJ}')
    e(f's_mov_b32 s{sT0}, 0')
    e('s_branch L_w1_zst')
    e.label('L_w1_zneg')
    e(f's_cmp_eq_u32 s{sTB}, 15')
    e('s_cbranch_scc0 L_w1_zdone')
    e(f's_cmp_eq_u32 s{sW}, 3')
    e('s_cbranch_scc0 L_w1_zdone')
    e(f's_add_u32 s{sT0}, s{sT3}, 16')
    e(f'v_cmp_le_i32 vcc, s{sT0}, v{vJ}')
    e(f's_mov_b32 s{sT0}, {127*20480}')
    e.label('L_w1_zst')
    e(f'v_lshlrev_b32 v{t0}, 4, v{vJ}')
    e(f'v_lshl_add_u32 v{t0}, v{vG}, 8, v{t0}')
    e(f'v_add_u32 v{t0}, s{sT0}, v{t0}')
    for i in range(4):
        e(f'v_mov_b32 v{vt+i}, 0')
    e(f's_and_saveexec_b64 s[{sMA}:{sMA+1}], vcc')
    for cc in range(5):
        e(f's_add_u32 s{sT2}, s{sT1}, {1024*cc}')
        e(f'buffer_store_dwordx4 {vr(vt,4)}, v{t0}, s[{SRD_HF}:{SRD_HF+3}], s{sT2} offen {STF}')
    e(f's_mov_b64 exec, s[{sMA}:{sMA+1}]')
    e.label('L_w1_zdone')
    ts(e, 10, TSON)


def gen_k1(name='k1_kernel', STF='sc1', TSON=False, code_prefetch=None):
    e = E()
    e(f'.globl {name}\n.p2align 8\n.type {name},@function\n{name}:')
    ts(e, 0, TSON, real=True)
    ts(e, 1, TSON)
    e('s_cmp_ge_u32 s2, 256')
    e('s_cbranch_scc1 L_k1_end')
    e(f's_load_dwordx4 s[8:11], s[0:1], 0')
    e(f's_load_dwordx2 s[12:13], s[0:1], 16')
    e(f's_load_dwordx8 s[16:23], s[0:1], 32')
    e(f's_load_dwordx2 s[24:25], s[0:1], 64')
    e(f's_load_dwordx2 s[26:27], s[0:1], 88')
    t0 = vT
    e(f'v_lshrrev_b32 v{t0}, 6, v0')
    e(f'v_and_b32 v{vL}, 63, v0')
    e(f'v_readfirstlane_b32 s{sW}, v{t0}')
    e(f'v_lshrrev_b32 v{vG}, 4, v{vL}')
    e(f'v_and_b32 v{vJ}, 15, v{vL}')
    e(f'v_lshlrev_b32 v{vL16}, 4, v{vL}')
    if code_prefetch is not None:
        code_prefetch(e)
    e(f's_and_b32 s{sXCD}, s2, 7')
    e(f's_lshr_b32 s{sY}, s2, 3')
    e(f's_lshr_b32 s{sT0}, s{sY}, 2')
    e(f's_and_b32 s{sT1}, s{sY}, 3')
    e(f's_cmp_lt_u32 s{sXCD}, 4')
    e('s_cbranch_scc0 L_k1_dec_b')
    e(f's_lshr_b32 s{sT2}, s{sXCD}, 1')
    e(f's_lshl_b32 s{sT2}, s{sT2}, 3')
    e(f's_add_u32 s{sTB}, s{sT2}, s{sT0}')
    e(f's_and_b32 s{sT2}, s{sXCD}, 1')
    e(f's_lshl_b32 s{sT2}, s{sT2}, 2')
    e(f's_add_u32 s{sSUB}, s{sT2}, s{sT1}')
    e(f's_mov_b32 s{sTYPE}, 0')
    e(f's_mul_i32 s{sSEG0}, s{sSUB}, 160')
    e(f's_add_u32 s{sSEG0}, s{sSEG0}, 1280')
    e(f's_movk_i32 s{sSEGD}, 1120')
    e('s_branch L_k1_dec_done')
    e.label('L_k1_dec_b')
    e(f's_and_b32 s{sT2}, s{sXCD}, 1')
    e(f's_lshl_b32 s{sT2}, s{sT2}, 3')
    e(f's_add_u32 s{sTB}, s{sT2}, s{sT0}')
    e(f's_mov_b32 s{sSUB}, s{sT1}')
    e(f's_cmp_lt_u32 s{sXCD}, 6')
    e(f's_cselect_b32 s{sTYPE}, 1, 2')
    e(f's_mul_i32 s{sSEG0}, s{sSUB}, 320')
    e(f's_mov_b32 s{sSEGD}, 0')
    e.label('L_k1_dec_done')
    e(f's_cmp_eq_u32 s{sTYPE}, 2')
    e(f's_movk_i32 s{sRS}, 3840')
    e(f's_cselect_b32 s{sRS}, 1280, s{sRS}')
    e(f's_lshl_b32 s{sWSTEP}, s{sRS}, 6')
    e(f's_lshl_b32 s{sM0X}, s{sW}, 12')
    e(f's_mul_i32 s{sM0W}, s{sW}, 5120')
    e(f's_add_u32 s{sM0W}, s{sM0W}, {WB}')
    e(f'v_lshrrev_b32 v{t0}, 3, v{vL}')
    e(f's_lshl_b32 s{sT0}, s{sW}, 5')
    e(f'v_add_u32 v{t0}, s{sT0}, v{t0}')
    e(f'v_mul_u32_u24 v{t0}, 1280, v{t0}')
    e(f'v_and_b32 v{t0+1}, 7, v{vL}')
    e(f'v_xor_b32 v{t0+1}, v{t0+1}, v{vG}')
    e(f'v_lshlrev_b32 v{t0+1}, 4, v{t0+1}')
    e(f'v_xor_b32 v{t0+2}, 64, v{t0+1}')
    for i in range(4):
        e(f'v_add_u32 v{vXD+i}, v{t0}, v{t0+1+(i&1)}')
        if i:
            e(f'v_add_u32 v{vXD+i}, {9216*i}, v{vXD+i}')
    ts(e, 2, TSON)
    e('s_waitcnt lgkmcnt(0)')
    ts(e, 3, TSON)
    e(f's_mul_i32 s{sT0}, s{sTB}, 163840')
    srd(e, SRD_X, sX, 163840, off=f's{sT0}')
    srd(e, SRD_GW, sGW, 1280)
    e(f's_mov_b32 m0, {GATEB}')
    e(f's_mov_b32 s{sXO}, 0')
    e.vm(f'buffer_load_dwordx4 v{vL16}, s[{SRD_GW}:{SRD_GW+3}], 0 offen lds', 'gw')
    e.vm(f'buffer_load_dwordx4 v{vL16}, s[{SRD_GW}:{SRD_GW+3}], 0 offen offset:1024 lds', 'gw')
    for st in range(2):
        e(f's_add_u32 m0, s{sM0X}, {st*SLOT}')
        e(f's_movk_i32 s{sXO}, {128*st}')
        for i in range(4):
            e.vm(f'buffer_load_dwordx4 v{vXD+i}, s[{SRD_X}:{SRD_X+3}], s{sXO} offen offset:{1024*i} lds', 'dma')
    for ii in range(5):
        e(f'v_add_u32 v{t0}, {64*ii}, v{vL}')
        e(f'v_mul_u32_u24 v{t0+1}, 3277, v{t0}')
        e(f'v_lshrrev_b32 v{t0+1}, 16, v{t0+1}')
        e(f'v_mul_u32_u24 v{t0+2}, 20, v{t0+1}')
        e(f'v_sub_u32 v{t0}, v{t0}, v{t0+2}')
        e(f'v_bfe_u32 v{t0+2}, v{t0+1}, 3, 1')
        e(f'v_lshlrev_b32 v{t0+2}, 1, v{t0+2}')
        e(f'v_sub_u32 v{t0}, v{t0}, v{t0+2}')
        e(f'v_add_u32 v{t0+2}, 20, v{t0}')
        e(f'v_cmp_gt_i32 vcc, 0, v{t0}')
        e(f's_lshl_b32 s{sT0}, s{sW}, 4')
        e(f'v_add_u32 v{t0+1}, s{sT0}, v{t0+1}')
        e(f'v_cndmask_b32 v{t0}, v{t0}, v{t0+2}, vcc')
        e(f'v_mul_u32_u24 v{t0+1}, s{sRS}, v{t0+1}')
        e(f'v_cmp_le_u32 vcc, 10, v{t0}')
        e(f'v_lshlrev_b32 v{t0}, 4, v{t0}')
        e(f'v_mov_b32 v{t0+2}, s{sSEGD}')
        e(f'v_cndmask_b32 v{t0+2}, 0, v{t0+2}, vcc')
        e(f'v_add3_u32 v{t0}, v{t0}, v{t0+1}, v{t0+2}')
        e(f'v_add_u32 v{vWD+ii}, s{sSEG0}, v{t0}')
        if 0 < ii < 4:
            e(f'v_subrev_u32 v{vWD+ii}, {1024*ii}, v{vWD+ii}')
    e(f's_cmp_eq_u32 s{sTYPE}, 2')
    e(f's_cselect_b32 s{SRD_W}, s{sW1}, s{sWQKV}')
    e(f's_cselect_b32 s{SRD_W+1}, s{sW1+1}, s{sWQKV+1}')
    e(f's_mul_i32 s{SRD_W+2}, s{sRS}, 640')
    e(f's_mov_b32 s{SRD_W+3}, 0x20000')
    e(f's_add_u32 s{sM0W2}, s{sM0W}, 4096')
    for st in range(2):
        e(f's_add_u32 m0, s{sM0W}, {st*SLOT}')
        e(f's_mul_i32 s{sWO_}, s{sWSTEP}, {st}')
        for i in range(4):
            e.vm(f'buffer_load_dwordx4 v{vWD+i}, s[{SRD_W}:{SRD_W+3}], s{sWO_} offen offset:{1024*i} lds', 'dma')
        e(f's_add_u32 m0, s{sM0W2}, {st*SLOT}')
        e('s_nop 0')
        e.vm(f'buffer_load_dwordx4 v{vWD+4}, s[{SRD_W}:{SRD_W+3}], s{sWO_} offen lds', 'dma')
    e(f's_movk_i32 s{sXO}, 256')
    e(f's_lshl_b32 s{sWO_}, s{sWSTEP}, 1')
    e(f's_mov_b32 s{sDSLOT}, {2*SLOT}')
    ts(e, 4, TSON)
    srd(e, SRD_WS, sWS, LY.WS_END)
    srd(e, SRD_HF, sWS, 128*20*1024, off=LY.HF)
    e(f'v_mov_b32 v{t0}, 0x3f803f80')
    e(f'v_lshlrev_b32 v{t0+1}, 2, v{vL}')
    e(f'v_add_u32 v{t0+1}, {ONESB}, v{t0+1}')
    e(f'v_cmp_gt_u32 vcc, 32, v{vL}')
    e(f's_and_saveexec_b64 s[{sMA}:{sMA+1}], vcc')
    e(f'ds_write_b32 v{t0+1}, v{t0}')
    e(f's_mov_b64 exec, s[{sMA}:{sMA+1}]')
    for i in range(4):
        e(f'v_accvgpr_write_b32 a{aONE+i}, v{t0}')
    e(f'v_lshrrev_b32 v{t0}, 1, v{vJ}')
    e(f'v_xor_b32 v{t0}, v{t0}, v{vG}')
    e(f'v_lshlrev_b32 v{t0}, 4, v{t0}')
    e(f'v_lshl_add_u32 v{t0}, v{vJ}, 7, v{t0}')
    e(f'v_add_u32 v{vXAb}, s{sM0X}, v{t0}')
    e(f'v_xor_b32 v{vXAb+1}, 64, v{vXAb}')
    e(f'v_lshrrev_b32 v{t0}, 2, v{vJ}')
    e(f'v_lshl_add_u32 v{t0}, v{vG}, 3, v{t0}')
    e(f'v_mul_u32_u24 v{t0}, 320, v{t0}')
    e(f'v_and_b32 v{t0+1}, 3, v{vJ}')
    e(f'v_lshl_add_u32 v{t0}, v{t0+1}, 3, v{t0}')
    e(f'v_add_u32 v{t0}, {WB}, v{t0}')
    e(f'v_and_b32 v{t0+1}, 1, v{vG}')
    e(f'v_lshl_add_u32 v{vWAb}, v{t0+1}, 5, v{t0}')
    e(f'v_xor_b32 v{t0+1}, 1, v{t0+1}')
    e(f'v_mul_u32_u24 v{t0+1}, 288, v{t0+1}')
    e(f'v_add_u32 v{vWA9b}, v{t0}, v{t0+1}')
    e(f's_lshl_b32 s{sT0}, s{sW}, 5')
    e(f'v_add_u32 v{vCAb}, s{sT0}, v{vWAb}')
    e(f'v_add_u32 v{vCAb+1}, 128, v{vCAb}')
    e(f'v_add_u32 v{vCAb+2}, 256, v{vWAb}')
    e(f's_cmp_eq_u32 s{sW}, 1')
    e('s_cbranch_scc0 L_k1_nc9')
    e(f'v_mov_b32 v{vCAb+2}, v{vWA9b}')
    e.label('L_k1_nc9')
    e(f'v_lshlrev_b32 v{t0}, 4, v{vG}')
    e(f'v_add_u32 v{t0}, {GATEB}, v{t0}')
    e(f'v_mov_b32 v{t0+1}, {ONESB}')
    e(f'v_cmp_gt_u32 vcc, 8, v{vJ}')
    e(f'v_mov_b32 v{t0+2}, 128')
    e(f'v_mov_b32 v{t0+3}, 0')
    e(f'v_cndmask_b32 v{vGA}, v{t0}, v{t0+1}, vcc')
    e(f'v_cndmask_b32 v{vGST}, v{t0+2}, v{t0+3}, vcc')
    for i in range(2):
        e(f'v_mov_b32 v{vXA+i}, v{vXAb+i}')
    e(f'v_mov_b32 v{vWA}, v{vWAb}')
    e(f'v_mov_b32 v{vWA9}, v{vWA9b}')
    for u in range(3):
        e(f'v_mov_b32 v{vCA+u}, v{vCAb+u}')
    e(f's_mov_b32 s{sRSLOT}, 0')
    for i in range(ACC, ACC_C + 12, 2):
        e(f'v_pk_mov_b32 v[{i}:{i+1}], 0, 0')
    ts(e, 5, TSON)
    e.force_wait(vm=5, ds=0)
    e('s_barrier')
    ts(e, 6, TSON)
    base = e
    e(f's_cmp_eq_u32 s{sTYPE}, 0')
    e('s_cbranch_scc1 L_k1_kv')
    e(f's_cmp_eq_u32 s{sTYPE}, 1')
    e('s_cbranch_scc1 L_k1_q')
    for kind, epi in (('w1', epi_w1), ('kv', epi_kv), ('q', epi_q)):
        b = base.fork()
        b.label(f'L_k1_{kind}')
        main_loop(b, kind, TSON)
        ts(b, 7, TSON)
        epi(b, STF, TSON)
        ts(b, 20, TSON)
        b('s_branch L_k1_fin')
        e.L += b.L
        e.maxds = max(e.maxds, b.maxds)
    e.label('L_k1_fin')
    ts_store(e, 0, TSON, SRD_WS, 'k1')
    e.label('L_k1_end')
    e('s_endpgm')
    return e.text() + descriptor(name, 256, 256, 100)
```

```python
from emit import *
import layout as LY
from coreb import CoreB, pair_groups, MF, MF16
from k1 import srd, ts, ts_store, gelu_multi, GC1, GC2, LOG2E, vTS

sW = 3
sX, sWS, sOUT = 4, 6, 8
sXCD, sY, sTB, sSUB = 10, 11, 12, 13
sT0, sT1, sT2, sT3 = 14, 15, 38, 39
SRD_A, SRD_W, SRD_WS, SRD_X = 16, 20, 24, 28
sAO, sWO, sM0, sCT = 32, 33, 34, 36
sMA, sMB, sMC, sMD = 40, 42, 44, 46
sP0, sP1, sP2 = 48, 49, 50

vL, vG, vJ, vL16 = 1, 2, 3, 4
vWA = 5
vT = 8
ACC = 64


def start(e, name, TSON, loads):
    e(f'.globl {name}\n.p2align 8\n.type {name},@function\n{name}:')
    ts(e, 0, TSON, real=True)
    ts(e, 1, TSON)
    e('s_cmp_ge_u32 s2, 256')
    e(f's_cbranch_scc1 L_{name}_end')
    for l in loads:
        e(l)
    e(f'v_lshrrev_b32 v{vT}, 6, v0')
    e(f'v_and_b32 v{vL}, 63, v0')
    e(f'v_readfirstlane_b32 s{sW}, v{vT}')
    e(f'v_lshrrev_b32 v{vG}, 4, v{vL}')
    e(f'v_and_b32 v{vJ}, 15, v{vL}')
    e(f'v_lshlrev_b32 v{vL16}, 4, v{vL}')
    e(f'v_mov_b32 v{vWA}, v{vL16}')
    e(f'v_add_u32 v{vWA+1}, 0x10000, v{vL16}')
    e(f'v_add_u32 v{vWA+2}, 0x20000, v{vL16}')
    e(f's_and_b32 s{sXCD}, s2, 7')
    e(f's_lshr_b32 s{sY}, s2, 3')


def finish(e, name, kidx, TSON):
    e.label(f'L_{name}_fin')
    ts_store(e, kidx, TSON, SRD_WS, name)
    e.label(f'L_{name}_end')
    e('s_endpgm')


def store_groups(e, nt, sPar, vP, srdn, sBase, STF, nm, vL8off):
    e(f's_cmp_eq_u32 s{sPar}, 0')
    e(f's_cbranch_scc0 L_{nm}_odd')
    for par in (0, 1):
        if par == 1:
            e(f's_branch L_{nm}_std')
            e.label(f'L_{nm}_odd')
        for (u, n, ch, half) in pair_groups(nt, par):
            off = ch * CH_STRIDE[0]
            if off >= 4096 - 8:
                e(f's_add_u32 s{sT3}, s{sBase}, {off}')
                so, io = sT3, 0
            else:
                so, io = sBase, off
            if n == 2:
                e(f'buffer_store_dwordx4 {vr(vP+2*u,4)}, v{vL16}, s[{srdn}:{srdn+3}], s{so} offen offset:{io} {STF}')
            else:
                e(f'buffer_store_dwordx2 {vr(vP+2*u,2)}, v{vL16}, s[{srdn}:{srdn+3}], s{so} offen offset:{io + 8*half} {STF}')
    e.label(f'L_{nm}_std')

CH_STRIDE = [1024]


def row_stats_from_packed(e, vP, groups, vS, vQ, aONE):
    first = True
    for (r, n) in groups:
        m = MF if n == 4 else MF16
        one = ar(aONE, n)
        cs = '0' if first else vr(vS, 4)
        cq = '0' if first else vr(vQ, 4)
        e(f'{m} {vr(vS,4)}, {one}, {vr(r,n)}, {cs}')
        e(f'{m} {vr(vQ,4)}, {vr(r,n)}, {vr(r,n)}, {cq}')
        first = False


def gen_k2(name='k2_kernel', STF='sc1', TSON=False, LDF=''):
    e = E()
    start(e, name, TSON, ['s_load_dwordx2 s[4:5], s[0:1], 0', 's_load_dwordx2 s[6:7], s[0:1], 88'])
    t0 = vT
    e(f's_and_b32 s{sT0}, s{sXCD}, 3')
    e(f's_lshr_b32 s{sT0}, s{sT0}, 1')
    e(f's_lshl_b32 s{sT0}, s{sT0}, 3')
    e(f's_lshr_b32 s{sT1}, s{sY}, 2')
    e(f's_add_u32 s{sTB}, s{sT0}, s{sT1}')
    e(f's_and_b32 s{sT0}, s{sXCD}, 1')
    e(f's_lshl_b32 s{sT0}, s{sT0}, 2')
    e(f's_and_b32 s{sT1}, s{sY}, 3')
    e(f's_add_u32 s{sSUB}, s{sT0}, s{sT1}')
    e(f's_cmp_lt_u32 s{sXCD}, 4')
    e(f's_cbranch_scc0 L_k2_o')
    base = e.fork()
    RES = 102400
    NT = 5
    vRD = 24
    for ii in range(5):
        e(f'v_add_u32 v{t0}, {64*ii}, v{vL}')
        e(f'v_mul_u32_u24 v{t0+1}, 6554, v{t0}')
        e(f'v_lshrrev_b32 v{t0+1}, 16, v{t0+1}')
        e(f'v_mul_u32_u24 v{t0+2}, 10, v{t0+1}')
        e(f'v_sub_u32 v{t0}, v{t0}, v{t0+2}')
        e(f'v_mul_u32_u24 v{t0+1}, 1280, v{t0+1}')
        e(f'v_lshl_add_u32 v{vRD+ii}, v{t0}, 4, v{t0+1}')
        if 0 < ii < 4:
            e(f'v_subrev_u32 v{vRD+ii}, {1024*ii}, v{vRD+ii}')
    e(f's_lshl_b32 s{sT0}, s{sTB}, 3')
    e(f's_lshl_b32 s{sT1}, s{sW}, 1')
    e(f's_add_u32 s{sT0}, s{sT0}, s{sT1}')
    e(f's_mov_b32 s{sP0}, s{sT0}')
    e(f's_mul_i32 s{sAO}, s{sT0}, 20480')
    e(f's_mul_i32 s{sWO}, s{sSUB}, {20*5*1024}')
    e(f's_mul_i32 s{sM0}, s{sW}, {NT*1024}')
    e(f's_add_u32 s{sWO}, s{sWO}, s{sM0}')
    ts(e, 2, TSON)
    e('s_waitcnt lgkmcnt(0)')
    ts(e, 3, TSON)
    srd(e, SRD_A, sWS, 128*20*1024, off=LY.HF)
    srd(e, SRD_W, sWS, 8*20*5*1024, off=LY.W2F)
    srd(e, SRD_WS, sWS, LY.WS_END)
    core = CoreB(e, 'w2', TT=2, NT=NT, NCH=20, R=5, D=4, AR=5, DCH=1, acc=ACC, aA=0, aW=160, vL16=vL16, vWA=vWA,
                 srdA=SRD_A, srdW=SRD_W, sAO=sAO, a_stride_c=1024, a_stride_t=20480, sWO=sWO, sM0=sM0, sT=sCT, ldflags=LDF)
    core.prologue_loads(e)
    ts(e, 4, TSON)
    e(f's_lshl_b32 s{sT0}, s{sP0}, 4')
    e(f's_mul_i32 s{sT0}, s{sT0}, 1280')
    e(f's_mul_i32 s{sT1}, s{sSUB}, 160')
    e(f's_add_u32 s{sT0}, s{sT0}, s{sT1}')
    srd(e, SRD_X, sX, 32*1280, off=f's{sT0}')
    e(f's_mul_i32 s{sP1}, s{sW}, 5120')
    e(f's_add_u32 s{sP1}, s{sP1}, {RES}')
    def res_fill():
        fl = []
        for ii in range(5):
            def f(e, ii=ii):
                if ii == 0:
                    e(f's_mov_b32 m0, s{sP1}')
                    e('s_nop 0')
                if ii == 4:
                    e(f's_add_u32 m0, s{sP1}, 4096')
                    e('s_nop 0')
                off = 1024*ii if ii < 4 else 0
                e.vm(f'buffer_load_dwordx4 v{vRD+ii}, s[{SRD_X}:{SRD_X+3}], 0 offen offset:{off} lds', 'res')
            fl.append(f)
        return fl
    e(f'v_mov_b32 v{t0}, 0x3f803f80')
    for i in range(4):
        e(f'v_accvgpr_write_b32 a{200+i}, v{t0}')
    fl = res_fill()
    core.run(e, extra_fill={16: fl})
    ts(e, 7, TSON)
    e(f'v_mul_u32_u24 v{t0}, 160, v{vJ}')
    e(f'v_lshl_add_u32 v{t0}, v{vG}, 3, v{t0}')
    e(f'v_add_u32 v{t0}, s{sP1}, v{t0}')
    e.wait(vm=['res'])
    XR = 32
    for tt in range(2):
        for u in range(NT):
            e.ds(f'ds_read_b64 {vr(XR + (tt*NT+u)*2, 2)}, v{t0} offset:{tt*16*160 + u*32}', ('x', tt))
    P = 112
    vU = 132
    e(f's_mul_i32 s{sT0}, s{sSUB}, 5')
    e(f's_and_b32 s{sP2}, s{sT0}, 1')
    e(f's_lshr_b32 s{sT0}, s{sT0}, 1')
    e(f's_lshl_b32 s{sT0}, s{sT0}, 10')
    e(f's_mul_i32 s{sT1}, s{sP0}, 20480')
    e(f's_add_u32 s{sT0}, s{sT0}, s{sT1}')
    e(f's_add_u32 s{sT0}, s{sT0}, {LY.X1F}')
    e(f's_add_u32 s{sT1}, s{sT0}, 20480')
    for tt in range(2):
        e.wait(ds=[('x', tt)])
        for u in range(NT):
            x = XR + (tt*NT+u)*2
            a = core.accr(tt, u)
            t = vU + 4*(u % 2)
            e(f'v_lshlrev_b32 v{t}, 16, v{x}')
            e(f'v_and_b32 v{t+1}, 0xffff0000, v{x}')
            e(f'v_lshlrev_b32 v{t+2}, 16, v{x+1}')
            e(f'v_and_b32 v{t+3}, 0xffff0000, v{x+1}')
            e(f'v_pk_add_f32 {vr(a,2)}, {vr(a,2)}, {vr(t,2)}')
            e(f'v_pk_add_f32 {vr(a+2,2)}, {vr(a+2,2)}, {vr(t+2,2)}')
            e(f'v_cvt_pk_bf16_f32 v{P + (tt*NT+u)*2}, v{a}, v{a+1}')
            e(f'v_cvt_pk_bf16_f32 v{P + (tt*NT+u)*2 + 1}, v{a+2}, v{a+3}')
        sb = sT0 if tt == 0 else sT1
        store_groups(e, NT, sP2, P + tt*NT*2, SRD_WS, sb, STF, f'x1_{tt}', None)
    VS = 140
    for gi in range(2):
        for tt in range(2):
            p = P + tt*NT*2 + 4*gi
            for k, vv in enumerate((VS + 8*tt, VS + 8*tt + 4)):
                c = '0' if gi == 0 else vr(vv, 4)
                e(f'{MF} {vr(vv,4)}, {ar(200,4) if k == 0 else vr(p,4)}, {vr(p,4)}, {c}')
    e('s_nop 7')
    for tt in range(2):
        p = P + tt*NT*2 + 8
        for k, vv in enumerate((VS + 8*tt, VS + 8*tt + 4)):
            e(f'{MF16} {vr(vv,4)}, {ar(200,2) if k == 0 else vr(p,2)}, {vr(p,2)}, {vr(vv,4)}')
    e(f'v_and_b32 v{t0+1}, 3, v{vJ}')
    e(f'v_cmp_eq_u32 s[{sMA}:{sMA+1}], 1, v{t0+1}')
    e(f'v_cmp_eq_u32 s[{sMB}:{sMB+1}], 2, v{t0+1}')
    e(f'v_cmp_eq_u32 s[{sMC}:{sMC+1}], 3, v{t0+1}')
    e(f'v_lshrrev_b32 v{t0+2}, 2, v{vJ}')
    e(f'v_lshlrev_b32 v{t0+2}, 4, v{t0+2}')
    e(f'v_add_u32 v{t0+2}, v{t0+2}, v{vJ}')
    e(f'v_lshlrev_b32 v{t0+2}, 2, v{t0+2}')
    e(f'v_lshlrev_b32 v{t0+3}, 6, v{vJ}')
    e(f's_lshl_b32 s{sT0}, s{sP0}, 10')
    e(f's_lshl_b32 s{sT1}, s{sSUB}, 3')
    e(f's_add_u32 s{sT0}, s{sT0}, s{sT1}')
    e(f's_add_u32 s{sT0}, s{sT0}, {LY.ST}')
    e('s_nop 3')
    for tt in range(2):
        q = VS + 8*tt + 4
        e(f'v_cndmask_b32 v{t0+4}, v{q}, v{q+1}, s[{sMA}:{sMA+1}]')
        e(f'v_cndmask_b32 v{t0+4}, v{t0+4}, v{q+2}, s[{sMB}:{sMB+1}]')
        e(f'v_cndmask_b32 v{t0+4}, v{t0+4}, v{q+3}, s[{sMC}:{sMC+1}]')
        e(f'v_mov_b32 v{t0+6+2*tt}, v{VS+8*tt}')
        e(f'ds_bpermute_b32 v{t0+7+2*tt}, v{t0+2}, v{t0+4}')
        e('s_nop 0')
    e('s_waitcnt lgkmcnt(0)')
    e(f'v_cmp_gt_u32 vcc, 16, v{vL}')
    e(f's_and_saveexec_b64 s[{sMA}:{sMA+1}], vcc')
    for tt in range(2):
        e(f'buffer_store_dwordx2 {vr(t0+6+2*tt,2)}, v{t0+3}, s[{SRD_WS}:{SRD_WS+3}], s{sT0} offen offset:{1024*tt} {STF}')
    e(f's_mov_b64 exec, s[{sMA}:{sMA+1}]')
    ts(e, 10, TSON)
    e(f's_branch L_{name}_fin')

    o = base
    o.label('L_k2_o')
    gen_o(o, STF, TSON, LDF)
    e.L += o.L
    finish(e, name, 1, TSON)
    return e.text() + descriptor(name, 256, 256, 100)


def gen_o(e, STF, TSON, LDF):
    t0 = vT
    AFR = 0
    ZT = 16384
    e(f's_lshl_b32 s{sT0}, s{sTB}, 3')
    e(f's_lshl_b32 s{sT1}, s{sW}, 1')
    e(f's_add_u32 s{sP0}, s{sT0}, s{sT1}')
    ts(e, 2, TSON)
    e('s_waitcnt lgkmcnt(0)')
    ts(e, 3, TSON)
    srd(e, SRD_WS, sWS, LY.WS_END)
    e(f's_mul_i32 s{sT0}, s{sW}, 3')
    e(f's_add_u32 s{sT0}, s{sT0}, 1')
    e(f's_cmp_eq_u32 s{sW}, 0')
    e(f's_cselect_b32 s{sP1}, 0, s{sT0}')
    e(f's_cselect_b32 s{sP2}, 3, 13')
    e(f's_mul_i32 s{sAO}, s{sSUB}, 14336')
    e(f's_add_u32 s{sAO}, s{sAO}, {LY.KVP}')
    BUF = [64, 128]
    SUM = 192
    def item_off(i):
        if i < 3:
            e(f's_add_u32 s{sT0}, s{sP1}, {i}')
        else:
            e(f's_mov_b32 s{sT0}, s{sP2}')
        e(f's_lshl_b32 s{sT0}, s{sT0}, 10')
        e(f's_add_u32 s{sT0}, s{sT0}, s{sAO}')
    def issue(i):
        item_off(i)
        for tb in range(16):
            e.vm(f'buffer_load_dwordx4 {vr(BUF[i%2] + 4*tb, 4)}, v{vL16}, s[{SRD_WS}:{SRD_WS+3}], s{sT0} offen {LDF}', ('p', i, tb))
            if tb < 15:
                e(f's_add_u32 s{sT0}, s{sT0}, {8*14336}')
    def reduce(i):
        b = BUF[i % 2]
        n = 16
        step = 1
        while step < 16:
            for k in range(0, 16, 2*step):
                e.wait(vm=[('p', i, min(k + 2*step - 1, 15))]) if step == 1 else None
                for h in range(2):
                    d = b + 4*k + 2*h
                    s_ = b + 4*(k + step) + 2*h
                    dst = d if step < 8 else SUM + 4*i + 2*h
                    e(f'v_pk_add_f32 {vr(dst,2)}, {vr(d,2)}, {vr(s_,2)}')
            step *= 2
    issue(0)
    issue(1)
    e(f's_lshl_b32 s{sT0}, s{sP0}, 3')
    e(f's_add_u32 s{sT0}, s{sT0}, s{sSUB}')
    e(f's_mul_i32 s{sT0}, s{sT0}, 2560')
    e(f's_add_u32 s{sWO}, s{sT0}, {LY.PQ}')
    e(f'v_lshlrev_b32 v{t0}, 3, v{vL}')
    e(f'v_add_u32 v{t0}, 2048, v{t0}')
    for tt in range(2):
        e(f's_add_u32 s{sT0}, s{sWO}, {tt*8*2560}')
        e.vm(f'buffer_load_dwordx4 {ar(12*tt,4)}, v{vL16}, s[{SRD_WS}:{SRD_WS+3}], s{sT0} offen {LDF}', 'pq')
        e.vm(f'buffer_load_dwordx4 {ar(12*tt+4,4)}, v{vL16}, s[{SRD_WS}:{SRD_WS+3}], s{sT0} offen offset:1024 {LDF}', 'pq')
        e.vm(f'buffer_load_dwordx2 {ar(12*tt+8,2)}, v{t0}, s[{SRD_WS}:{SRD_WS+3}], s{sT0} offen {LDF}', 'pq')
    reduce(0)
    issue(2)
    reduce(1)
    issue(3)
    reduce(2)
    reduce(3)
    ts(e, 4, TSON)
    e(f'v_mov_b32 v{t0}, 0')
    e(f'v_mov_b32 v{t0+1}, 0')
    e(f'ds_write_b64 v{vL16}, {vr(t0,2)} offset:{AFR + (1*3+1)*1024 + 8}')
    e(f'ds_write_b64 v{vL16}, {vr(t0,2)} offset:{AFR + (2*3+0)*1024}')
    e(f'ds_write_b64 v{vL16}, {vr(t0,2)} offset:{AFR + (4*3+1)*1024}')
    for i in range(4):
        sm = SUM + 4*i
        if i < 3:
            e(f's_add_u32 s{sT0}, s{sP1}, {i}')
        else:
            e(f's_mov_b32 s{sT0}, s{sP2}')
            e(f's_cmp_eq_u32 s{sT0}, 13')
            e(f's_cbranch_scc1 L_o_z')
        e(f's_add_u32 s{sT1}, s{sT0}, 1')
        e(f's_mul_i32 s{sT1}, s{sT1}, 21846')
        e(f's_lshr_b32 s{sT1}, s{sT1}, 16')
        e(f's_lshl_b32 s{sT2}, s{sT1}, 1')
        e(f's_sub_u32 s{sT2}, s{sT0}, s{sT2}')
        e(f's_lshl_b32 s{sT3}, s{sT2}, 4')
        e(f'v_lshl_add_u32 v{t0+2}, v{vG}, 2, s{sT3}')
        e(f's_lshl_b32 s{sT3}, s{sT1}, 4')
        e(f'v_add_u32 v{t0+3}, s{sT3}, v{vJ}')
        e(f'v_mul_u32_u24 v{t0+2}, 3277, v{t0+2}')
        e(f'v_mul_u32_u24 v{t0+3}, 3277, v{t0+3}')
        e(f'v_lshrrev_b32 v{t0+2}, 16, v{t0+2}')
        e(f'v_lshrrev_b32 v{t0+3}, 16, v{t0+3}')
        e(f'v_cvt_pk_bf16_f32 v{t0+4}, v{sm}, v{sm+1}')
        e(f'v_cmp_eq_u32 vcc, v{t0+2}, v{t0+3}')
        e(f'v_cvt_pk_bf16_f32 v{t0+5}, v{sm+2}, v{sm+3}')
        e(f's_mul_i32 s{sT1}, s{sT1}, 3')
        e(f's_lshr_b32 s{sT3}, s{sT2}, 1')
        e(f's_add_u32 s{sT1}, s{sT1}, s{sT3}')
        e(f's_lshl_b32 s{sT1}, s{sT1}, 10')
        e(f's_and_b32 s{sT2}, s{sT2}, 1')
        e(f's_lshl_b32 s{sT2}, s{sT2}, 3')
        e(f's_add_u32 s{sT1}, s{sT1}, s{sT2}')
        e(f'v_cndmask_b32 v{t0+4}, 0, v{t0+4}, vcc')
        e(f'v_cndmask_b32 v{t0+5}, 0, v{t0+5}, vcc')
        e(f'v_add_u32 v{t0+6}, s{sT1}, v{vL16}')
        e(f'ds_write_b64 v{t0+6}, {vr(t0+4,2)} offset:{AFR}')
    e('s_branch L_o_wd')
    e.label('L_o_z')
    sm = SUM + 12
    e(f'v_cvt_pk_bf16_f32 v{t0+4}, v{sm}, v{sm+1}')
    e(f'v_cvt_pk_bf16_f32 v{t0+5}, v{sm+2}, v{sm+3}')
    e(f'v_lshl_add_u32 v{t0+6}, v{vJ}, 2, v{vG}')
    e(f'v_lshlrev_b32 v{t0+6}, 3, v{t0+6}')
    e(f'v_cmp_gt_u32 vcc, 5, v{vJ}')
    e(f's_and_saveexec_b64 s[{sMA}:{sMA+1}], vcc')
    e(f'ds_write_b64 v{t0+6}, {vr(t0+4,2)} offset:{ZT}')
    e(f's_mov_b64 exec, s[{sMA}:{sMA+1}]')
    e.label('L_o_wd')
    e('s_waitcnt lgkmcnt(0)')
    e('s_barrier')
    ts(e, 5, TSON)
    aK = 32
    used = {0: [0], 1: [0, 1], 2: [0, 1], 3: [1, 2], 4: [1, 2]}
    kreg = {}
    r = aK
    for te in range(5):
        for c in used[te]:
            kreg[(te, c)] = r
            if c < 2:
                e.ds(f'ds_read_b128 {ar(r,4)}, v{vL16} offset:{AFR + (te*3+c)*1024}', 'kf')
            else:
                e.ds(f'ds_read_b64 {ar(r,2)}, v{vL16} offset:{AFR + (te*3+c)*1024}', 'kf')
            r += 4
    ZM = 64
    e(f'v_lshlrev_b32 v{t0}, 3, v{vG}')
    for td in range(5):
        e.ds(f'ds_read_b64 {vr(ZM + 2*td, 2)}, v{t0} offset:{ZT + td*32}', 'z')
    e(f'v_and_b32 v{t0+1}, 3, v{vJ}')
    e.wait(ds=['z'])
    for td in range(5):
        e(f'v_lshlrev_b32 v{t0+2}, 2, v{vG}')
        e(f'v_add_u32 v{t0+2}, {16*td}, v{t0+2}')
        e(f'v_mul_u32_u24 v{t0+2}, 3277, v{t0+2}')
        e(f'v_lshrrev_b32 v{t0+2}, 16, v{t0+2}')
        e(f'v_cmp_eq_u32 vcc, v{t0+2}, v{t0+1}')
        e('s_nop 1')
        e(f'v_cndmask_b32 v{ZM+2*td}, 0, v{ZM+2*td}, vcc')
        e(f'v_cndmask_b32 v{ZM+2*td+1}, 0, v{ZM+2*td+1}, vcc')
    e(f'v_cmp_eq_u32 s[{sMA}:{sMA+1}], 0, v{vG}')
    e(f'v_cmp_gt_u32 s[{sMB}:{sMB+1}], 2, v{vG}')
    e(f'v_cmp_gt_u32 s[{sMC}:{sMC+1}], 3, v{vG}')
    e(f's_mul_i32 s{sT0}, s{sSUB}, 5')
    e(f's_and_b32 s{sP2}, s{sT0}, 1')
    e(f's_lshr_b32 s{sT0}, s{sT0}, 1')
    e(f's_lshl_b32 s{sT0}, s{sT0}, 10')
    e(f's_mul_i32 s{sT1}, s{sP0}, 20480')
    e(f's_add_u32 s{sT0}, s{sT0}, s{sT1}')
    e(f's_add_u32 s{sP1}, s{sT0}, {LY.OF}')
    e.wait(ds=['kf'], vm=['pq'])
    NUM = 80
    DEN = 120
    for tt in range(2):
        pq = 12*tt
        d = vr(DEN + 4*tt, 4)
        e(f'{MF} {d}, {vr(ZM,4)}, {ar(pq,4)}, 0')
        for te in range(5):
            n = vr(NUM + (tt*5+te)*4, 4)
            c = used[te][0]
            e(f'{MF} {n}, {ar(kreg[(te,c)],4)}, {ar(pq+4*c,4)}, 0')
        e(f'{MF} {d}, {vr(ZM+4,4)}, {ar(pq+4,4)}, {d}')
        for te in (1, 2):
            n = vr(NUM + (tt*5+te)*4, 4)
            e(f'{MF} {n}, {ar(kreg[(te,1)],4)}, {ar(pq+4,4)}, {n}')
    e('s_nop 7')
    for tt in range(2):
        pq = 12*tt
        d = vr(DEN + 4*tt, 4)
        e(f'{MF16} {d}, {vr(ZM+8,2)}, {ar(pq+8,2)}, {d}')
        for te in (3, 4):
            n = vr(NUM + (tt*5+te)*4, 4)
            e(f'{MF16} {n}, {ar(kreg[(te,2)],2)}, {ar(pq+8,2)}, {n}')
    e('s_nop 7')
    P = 128
    for tt in range(2):
        d = DEN + 4*tt
        for r_ in range(4):
            e(f'v_add_f32 v{d+r_}, 0x{f2u(1e-6):08x}, v{d+r_}')
        for r_ in range(4):
            e(f'v_rcp_f32 v{d+r_}, v{d+r_}')
        e('s_nop 0')
        S = 150
        e(f'v_mov_b32 v{S}, v{d}')
        e(f'v_cndmask_b32 v{S+2}, v{d+1}, v{d}, s[{sMA}:{sMA+1}]')
        e(f'v_cndmask_b32 v{S+4}, v{d+2}, v{d+1}, s[{sMB}:{sMB+1}]')
        e(f'v_cndmask_b32 v{S+6}, v{d+3}, v{d+2}, s[{sMC}:{sMC+1}]')
        e(f'v_mov_b32 v{S+8}, v{d+3}')
        for te in range(5):
            n = NUM + (tt*5+te)*4
            e(f'v_pk_mul_f32 {vr(n,2)}, {vr(n,2)}, {vr(S+2*te,2)} op_sel_hi:[1,0]')
            e(f'v_pk_mul_f32 {vr(n+2,2)}, {vr(n+2,2)}, {vr(S+2*te,2)} op_sel_hi:[1,0]')
            e(f'v_cvt_pk_bf16_f32 v{P+(tt*5+te)*2}, v{n}, v{n+1}')
            e(f'v_cvt_pk_bf16_f32 v{P+(tt*5+te)*2+1}, v{n+2}, v{n+3}')
        if tt == 1:
            e(f's_add_u32 s{sP1}, s{sP1}, 20480')
        store_groups(e, 5, sP2, P + tt*10, SRD_WS, sP1, STF, f'o_{tt}', None)
    ts(e, 10, TSON)


def gen_k3(name='k3_kernel', STF='sc1', TSON=False, LDF=''):
    e = E()
    start(e, name, TSON, ['s_load_dwordx2 s[6:7], s[0:1], 88'])
    t0 = vT
    e(f's_and_b32 s{sT0}, s{sXCD}, 1')
    e(f's_lshl_b32 s{sT0}, s{sT0}, 3')
    e(f's_lshr_b32 s{sT1}, s{sY}, 2')
    e(f's_add_u32 s{sTB}, s{sT0}, s{sT1}')
    e(f's_and_b32 s{sSUB}, s{sY}, 3')
    e(f's_lshl_b32 s{sT0}, s{sTB}, 3')
    e(f's_lshl_b32 s{sT1}, s{sW}, 1')
    e(f's_add_u32 s{sP0}, s{sT0}, s{sT1}')
    e(f's_mul_i32 s{sAO}, s{sP0}, 20480')
    e(f's_cmp_lt_u32 s{sXCD}, 6')
    e('s_cbranch_scc0 L_k3_wo')
    base = e.fork()
    NT = 9
    CSL = 4 * 4 * NT * 1024
    e(f's_lshr_b32 s{sT0}, s{sXCD}, 1')
    e(f's_lshl_b32 s{sT0}, s{sT0}, 2')
    e(f's_add_u32 s{sSUB}, s{sSUB}, s{sT0}')
    e(f's_mul_i32 s{sWO}, s{sSUB}, {20*NT*1024}')
    e(f's_mul_i32 s{sM0}, s{sW}, {NT*1024}')
    e(f's_add_u32 s{sWO}, s{sWO}, s{sM0}')
    ts(e, 2, TSON)
    e('s_waitcnt lgkmcnt(0)')
    ts(e, 3, TSON)
    srd(e, SRD_A, sWS, 128*20*1024, off=LY.X1F)
    srd(e, SRD_W, sWS, 12*20*NT*1024, off=LY.W3F)
    srd(e, SRD_WS, sWS, LY.WS_END)
    core = CoreB(e, 'w3', TT=2, NT=NT, NCH=20, R=4, D=3, AR=5, DCH=1, acc=ACC, aA=0, aW=160, vL16=vL16, vWA=vWA,
                 srdA=SRD_A, srdW=SRD_W, sAO=sAO, a_stride_c=1024, a_stride_t=20480, sWO=sWO, sM0=sM0, sT=sCT, ldflags=LDF)
    core.prologue_loads(e)
    ts(e, 4, TSON)
    vCS = 32
    vST = 36
    e(f'v_lshlrev_b32 v{t0}, 2, v0')
    e(f's_mul_i32 s{sT0}, s{sSUB}, {144*4}')
    e(f's_add_u32 s{sT0}, s{sT0}, {LY.CS3}')
    e(f'v_mov_b32 v{t0+1}, 0x80000000')
    e(f'v_cmp_gt_u32 vcc, 144, v0')
    e(f'v_lshlrev_b32 v{t0+2}, 6, v{vJ}')
    e(f'v_lshl_add_u32 v{t0+2}, v{vG}, 4, v{t0+2}')
    e(f'v_cndmask_b32 v{t0+1}, v{t0+1}, v{t0}, vcc')
    def small(e):
        for p in range(3):
            e(f's_add_u32 s{sT1}, s{sT0}, {p*1728*4}')
            e.vm(f'buffer_load_dword v{vCS+p}, v{t0+1}, s[{SRD_WS}:{SRD_WS+3}], s{sT1} offen {LDF}', 'small')
        e(f's_lshl_b32 s{sT1}, s{sP0}, 10')
        e(f's_add_u32 s{sT1}, s{sT1}, {LY.ST}')
        for tt in range(2):
            e.vm(f'buffer_load_dwordx4 {vr(vST+4*tt,4)}, v{t0+2}, s[{SRD_WS}:{SRD_WS+3}], s{sT1} offen offset:{1024*tt} {LDF}', 'small')
    def cs_to_lds(e):
        e.wait(vm=['small'])
        e(f'v_add_f32 v{vCS}, v{vCS}, v{vCS+1}')
        e(f'v_add_f32 v{vCS}, v{vCS}, v{vCS+2}')
        e(f'v_add_u32 v{t0+3}, {CSL}, v{t0}')
        e(f'v_cmp_gt_u32 vcc, 144, v0')
        e(f's_and_saveexec_b64 s[{sMA}:{sMA+1}], vcc')
        e.ds(f'ds_write_b32 v{t0+3}, v{vCS}', 'csw')
        e(f's_mov_b64 exec, s[{sMA}:{sMA+1}]')
    core.run(e, extra_fill={4: [small], 12: [cs_to_lds]})
    ts(e, 7, TSON)
    CS = 140
    e(f'v_lshlrev_b32 v{t0+3}, 4, v{vG}')
    e(f'v_add_u32 v{t0+3}, {CSL}, v{t0+3}')
    for u in range(NT):
        e.ds(f'ds_read_b128 {vr(CS+4*u,4)}, v{t0+3} offset:{64*u}', 'cs')
    vM = 176
    for tt in range(2):
        s_ = vST + 4*tt
        e(f'v_add_f32 v{s_}, v{s_}, v{s_+2}')
        e(f'v_add_f32 v{s_+1}, v{s_+1}, v{s_+3}')
        for k in range(2):
            for swap in ('v_permlane32_swap_b32', 'v_permlane16_swap_b32'):
                pass
        for swap in ('v_permlane32_swap_b32', 'v_permlane16_swap_b32'):
            e(f'v_mov_b32 v{s_+2}, v{s_}')
            e(f'v_mov_b32 v{s_+3}, v{s_+1}')
            e('s_nop 1')
            e(f'{swap} v{s_}, v{s_+2}')
            e(f'{swap} v{s_+1}, v{s_+3}')
            e('s_nop 1')
            e(f'v_add_f32 v{s_}, v{s_}, v{s_+2}')
            e(f'v_add_f32 v{s_+1}, v{s_+1}, v{s_+3}')
        m = vM + 4*tt
        e(f'v_mul_f32 v{m}, 0x{f2u(-1.0/640):08x}, v{s_}')
        e(f'v_mul_f32 v{s_+1}, 0x{f2u(1.0/640):08x}, v{s_+1}')
        e(f'v_fma_f32 v{s_+1}, -v{m}, v{m}, v{s_+1}')
        e(f'v_add_f32 v{s_+1}, 0x{f2u(1e-5):08x}, v{s_+1}')
        e(f'v_rsq_f32 v{m+2}, v{s_+1}')
        e(f'v_mov_b32 v{m+1}, v{m}')
        e(f'v_mov_b32 v{m+3}, v{m+2}')
    vc = 184
    e(f'v_mov_b32 v{vc}, 0x{f2u(GC1):08x}')
    e(f'v_mov_b32 v{vc+1}, 0x{f2u(GC1):08x}')
    e(f'v_mov_b32 v{vc+2}, 0x{f2u(GC2):08x}')
    e(f'v_mov_b32 v{vc+3}, 0x{f2u(GC2):08x}')
    e(f's_mul_i32 s{sT0}, s{sSUB}, 9')
    e(f's_and_b32 s{sP2}, s{sT0}, 1')
    e(f's_lshr_b32 s{sT0}, s{sT0}, 1')
    e(f's_lshr_b32 s{sT1}, s{sP0}, 2')
    e(f's_mul_i32 s{sT1}, s{sT1}, 54')
    e(f's_add_u32 s{sT0}, s{sT0}, s{sT1}')
    e(f's_lshl_b32 s{sT0}, s{sT0}, 2')
    e(f's_and_b32 s{sT1}, s{sP0}, 3')
    e(f's_add_u32 s{sT0}, s{sT0}, s{sT1}')
    e(f's_lshl_b32 s{sT0}, s{sT0}, 10')
    e(f's_add_u32 s{sP1}, s{sT0}, {LY.HH}')
    e.wait(ds=['cs'])
    vt = 188
    P = 196
    CH_STRIDE[0] = 4096
    for tt in range(2):
        m = vM + 4*tt
        p = P + 18*tt
        for u0 in range(0, NT, 2):
            us = [u for u in (u0, u0+1) if u < NT]
            regs, css = [], []
            for u in us:
                regs += [core.accr(tt, u), core.accr(tt, u) + 2]
                css += [CS + 4*u, CS + 4*u + 2]
            for r, c in zip(regs, css):
                e(f'v_pk_fma_f32 {vr(r,2)}, {vr(c,2)}, {vr(m,2)}, {vr(r,2)}')
            for r in regs:
                e(f'v_pk_mul_f32 {vr(r,2)}, {vr(r,2)}, {vr(m+2,2)}')
            gelu_multi(e, regs, vc, [vt, vt+2, vt+4, vt+6][:len(regs)])
            for k, r in enumerate(regs):
                e(f'v_cvt_pk_bf16_f32 v{p + 2*u0 + k}, v{r}, v{r+1}')
        if tt == 1:
            e(f's_add_u32 s{sP1}, s{sP1}, 1024')
        store_groups(e, NT, sP2, p, SRD_WS, sP1, STF, f'hh_{tt}', None)
    CH_STRIDE[0] = 1024
    ts(e, 10, TSON)
    e(f's_branch L_{name}_fin')

    o = base
    o.label('L_k3_wo')
    NT = 10
    o(f's_mul_i32 s{sWO}, s{sSUB}, {20*NT*1024}')
    o(f's_mul_i32 s{sM0}, s{sW}, {NT*1024}')
    o(f's_add_u32 s{sWO}, s{sWO}, s{sM0}')
    ts(o, 2, TSON)
    o('s_waitcnt lgkmcnt(0)')
    ts(o, 3, TSON)
    srd(o, SRD_A, sWS, 128*20*1024, off=LY.OF)
    srd(o, SRD_W, sWS, 4*20*NT*1024, off=LY.WOF)
    srd(o, SRD_WS, sWS, LY.WS_END)
    core = CoreB(o, 'wo', TT=2, NT=NT, NCH=20, R=4, D=3, AR=5, DCH=1, acc=ACC, aA=0, aW=160, vL16=vL16, vWA=vWA,
                 srdA=SRD_A, srdW=SRD_W, sAO=sAO, a_stride_c=1024, a_stride_t=20480, sWO=sWO, sM0=sM0, sT=sCT, ldflags=LDF)
    core.prologue_loads(o)
    ts(o, 4, TSON)
    core.run(o)
    ts(o, 7, TSON)
    o(f's_mul_i32 s{sT0}, s{sP0}, 20480')
    o(f's_mul_i32 s{sT1}, s{sSUB}, 5120')
    o(f's_add_u32 s{sT0}, s{sT0}, s{sT1}')
    o(f's_add_u32 s{sT0}, s{sT0}, {LY.AF}')
    o('s_nop 4')
    P = 150
    k = 0
    for tt in range(2):
        for cc in range(5):
            p = P + 4*(k % 8)
            k += 1
            for h, u in enumerate((2*cc, 2*cc+1)):
                a = core.accr(tt, u)
                o(f'v_cvt_pk_bf16_f32 v{p+2*h}, v{a}, v{a+1}')
                o(f'v_cvt_pk_bf16_f32 v{p+2*h+1}, v{a+2}, v{a+3}')
            o(f's_add_u32 s{sT1}, s{sT0}, {tt*20480 + cc*1024}')
            o(f'buffer_store_dwordx4 {vr(p,4)}, v{vL16}, s[{SRD_WS}:{SRD_WS+3}], s{sT1} offen {STF}')
    ts(o, 10, TSON)
    e.L += o.L
    finish(e, name, 2, TSON)
    return e.text() + descriptor(name, 256, 256, 100)


def gen_k4(name='k4_kernel', STF='', TSON=False, LDF=''):
    e = E()
    start(e, name, TSON, ['s_load_dwordx2 s[6:7], s[0:1], 88', 's_load_dwordx2 s[8:9], s[0:1], 72'])
    t0 = vT
    NT = 5
    e(f's_lshr_b32 s{sT0}, s{sXCD}, 1')
    e(f's_lshl_b32 s{sT0}, s{sT0}, 3')
    e(f's_lshr_b32 s{sT1}, s{sY}, 2')
    e(f's_add_u32 s{sTB}, s{sT0}, s{sT1}')
    e(f's_and_b32 s{sT0}, s{sXCD}, 1')
    e(f's_lshl_b32 s{sT0}, s{sT0}, 2')
    e(f's_and_b32 s{sT1}, s{sY}, 3')
    e(f's_add_u32 s{sSUB}, s{sT0}, s{sT1}')
    e(f's_lshl_b32 s{sT0}, s{sTB}, 2')
    e(f's_add_u32 s{sP0}, s{sT0}, s{sW}')
    e(f's_mul_i32 s{sAO}, s{sTB}, {54*4096}')
    e(f's_lshl_b32 s{sT0}, s{sW}, 10')
    e(f's_add_u32 s{sAO}, s{sAO}, s{sT0}')
    e(f's_mul_i32 s{sWO}, s{sSUB}, {54*NT*1024}')
    e(f's_mul_i32 s{sM0}, s{sW}, {NT*1024}')
    e(f's_add_u32 s{sWO}, s{sWO}, s{sM0}')
    ts(e, 2, TSON)
    e('s_waitcnt lgkmcnt(0)')
    ts(e, 3, TSON)
    srd(e, SRD_A, sWS, 32*54*4096, off=LY.HH)
    srd(e, SRD_W, sWS, LY.WS_END - LY.W4F, off=LY.W4F)
    srd(e, SRD_WS, sWS, LY.WS_END)
    srd(e, SRD_X, sOUT, 2048*1280)
    core = CoreB(e, 'w4', TT=1, NT=NT, NCH=54, R=7, D=6, AR=7, DCH=2, acc=ACC, aA=0, aW=160, vL16=vL16, vWA=vWA,
                 srdA=SRD_A, srdW=SRD_W, sAO=sAO, a_stride_c=4096, a_stride_t=0, sWO=sWO, sM0=sM0, sT=sCT, ldflags=LDF)
    core.prologue_loads(e)
    ts(e, 4, TSON)
    XA, XX, XG = 32, 42, 52
    def small(e):
        e(f's_mul_i32 s{sT0}, s{sSUB}, 5')
        e(f's_mul_i32 s{sT1}, s{sP0}, 20480')
        for u in range(NT):
            e(f's_add_u32 s{sT2}, s{sT0}, {u}')
            e(f's_and_b32 s{sT3}, s{sT2}, 1')
            e(f's_lshr_b32 s{sT2}, s{sT2}, 1')
            e(f's_lshl_b32 s{sT2}, s{sT2}, 10')
            e(f's_lshl_b32 s{sT3}, s{sT3}, 3')
            e(f's_add_u32 s{sT2}, s{sT2}, s{sT3}')
            e(f's_add_u32 s{sT2}, s{sT2}, s{sT1}')
            e(f's_add_u32 s{sT3}, s{sT2}, {LY.AF}')
            e.vm(f'buffer_load_dwordx2 {vr(XA+2*u,2)}, v{vL16}, s[{SRD_WS}:{SRD_WS+3}], s{sT3} offen {LDF}', 'small')
            e(f's_add_u32 s{sT3}, s{sT2}, {LY.X1F}')
            e.vm(f'buffer_load_dwordx2 {vr(XX+2*u,2)}, v{vL16}, s[{SRD_WS}:{SRD_WS+3}], s{sT3} offen {LDF}', 'small')
        e(f'v_lshlrev_b32 v{t0}, 2, v{vJ}')
        e(f's_lshl_b32 s{sT2}, s{sP0}, 6')
        e(f's_add_u32 s{sT2}, s{sT2}, {LY.G}')
        e.vm(f'buffer_load_dword v{XG}, v{t0}, s[{SRD_WS}:{SRD_WS+3}], s{sT2} offen {LDF}', 'small')
    core.run(e, extra_fill={44: [small]})
    ts(e, 7, TSON)
    e.wait(vm=['small'])
    e(f's_lshl_b32 s{sT0}, s{sP0}, 4')
    e(f'v_add_u32 v{t0}, s{sT0}, v{vJ}')
    e(f'v_mul_u32_u24 v{t0}, 1280, v{t0}')
    e(f'v_lshl_add_u32 v{t0}, v{vG}, 3, v{t0}')
    e(f's_mul_i32 s{sT0}, s{sSUB}, 160')
    e(f'v_sub_f32 v{XG+1}, 1.0, v{XG}')
    vU = 100
    for u in range(NT):
        a = core.accr(0, u)
        x = XX + 2*u
        y = XA + 2*u
        t = vU + 8*(u % 2)
        e(f'v_lshlrev_b32 v{t}, 16, v{x}')
        e(f'v_and_b32 v{t+1}, 0xffff0000, v{x}')
        e(f'v_lshlrev_b32 v{t+2}, 16, v{x+1}')
        e(f'v_and_b32 v{t+3}, 0xffff0000, v{x+1}')
        e(f'v_lshlrev_b32 v{t+4}, 16, v{y}')
        e(f'v_and_b32 v{t+5}, 0xffff0000, v{y}')
        e(f'v_lshlrev_b32 v{t+6}, 16, v{y+1}')
        e(f'v_and_b32 v{t+7}, 0xffff0000, v{y+1}')
        for h in range(2):
            e(f'v_pk_add_f32 {vr(a+2*h,2)}, {vr(a+2*h,2)}, {vr(t+2*h,2)}')
        for h in range(2):
            e(f'v_pk_mul_f32 {vr(a+2*h,2)}, {vr(a+2*h,2)}, {vr(XG+1,2) if (XG+1) % 2 == 0 else vr(XG,2)} ' +
              ('op_sel_hi:[1,0]' if (XG+1) % 2 == 0 else 'op_sel:[0,1] op_sel_hi:[1,1]'))
        for h in range(2):
            e(f'v_pk_fma_f32 {vr(a+2*h,2)}, {vr(t+4+2*h,2)}, {vr(XG,2)}, {vr(a+2*h,2)} op_sel_hi:[1,0,1]')
        p = 120 + 2*u
        e(f'v_cvt_pk_bf16_f32 v{p}, v{a}, v{a+1}')
        e(f'v_cvt_pk_bf16_f32 v{p+1}, v{a+2}, v{a+3}')
        e(f'buffer_store_dwordx2 {vr(p,2)}, v{t0}, s[{SRD_X}:{SRD_X+3}], s{sT0} offen offset:{32*u} {STF}')
    ts(e, 10, TSON)
    finish(e, name, 3, TSON)
    return e.text() + descriptor(name, 256, 256, 100)
```

```python
S = 2048
D = 640
F = 1728

HF = 0
PQ = HF + 128 * 20 * 1024
KVP = PQ + 128 * 8 * 2560
G = KVP + 16 * 8 * 14336
W2F = G + 8192
W3F = W2F + 8 * 20 * 5 * 1024
W4F = W3F + 12 * 20 * 9 * 1024
WOF = W4F + 8 * 54 * 5 * 1024
CS3 = WOF + 4 * 20 * 10 * 1024
X1F = CS3 + 24576
ST = X1F + 128 * 20 * 1024
OF = ST + 2048 * 64
HH = OF + 128 * 20 * 1024
AF = HH + 32 * 54 * 4 * 1024
TS = AF + 128 * 20 * 1024
WS_END = TS + 4 * 256 * 256

KV_TILES = [(0, 0), (1, 0), (0, 1), (1, 1), (2, 1), (1, 2), (2, 2), (3, 2), (2, 3), (3, 3), (4, 3), (3, 4), (4, 4)]
```

```python
import sys
from emit import *
import layout as LY
import k1, k234

HEAD = open('gated_mix__linear_attn_block__mixer_s_mlp__prompt.s.ref').read().split('; Override launch')[0]

def build(kernels=('k1', 'k2', 'k3', 'k4'), STF='sc1', TSON=False, STF4='', LDF=''):
    s = HEAD
    for k in kernels:
        s += f'; @launch kernel={k}_kernel grid=(256,1,1) block=(256,1,1) lds=163840\n'
    s += '.amdgcn_target "amdgcn-amd-amdhsa--gfx950"\n.text\n'
    for k in dict.fromkeys(kernels):
        if k == 'k1': s += k1.gen_k1('k1_kernel', STF, TSON)
        if k == 'k2': s += k234.gen_k2('k2_kernel', STF, TSON, LDF)
        if k == 'k3': s += k234.gen_k3('k3_kernel', STF, TSON, LDF)
        if k == 'k4': s += k234.gen_k4('k4_kernel', STF4, TSON, LDF)
    return s

if __name__ == '__main__':
    sys.stdout.write(build())
```
